```python
import torch

def _softmax(x, axis=-1):
    return torch.softmax(x, dim=axis)

def _gelu(x):
    return torch.nn.functional.gelu(x, approximate='tanh')

def _silu(x):
    return torch.nn.functional.silu(x)

def _sigmoid(x):
    return torch.sigmoid(x)

def _layernorm(x, axis=-1, eps=1e-05):
    m = x.mean(dim=axis, keepdim=True)
    v = x.var(dim=axis, keepdim=True, unbiased=False)
    return (x - m) / torch.sqrt(v + eps)

def _scatter_add(tgt, idx, src, axis=0):
    return tgt.clone().index_add_(axis, idx, src)

def _segment_sum(src, seg, n):
    out = torch.zeros((n,) + src.shape[1:], dtype=src.dtype)
    return out.index_add_(0, seg, src)

def _pad(x, pw):
    flat = tuple((v for pair in reversed(pw) for v in pair))
    return torch.nn.functional.pad(x, flat)
kernel_name = 'standalone__tree_speculative_verify_tree_attention_over_candidate_token_tree__decode'

def setup_inputs():

    _w = lambda a: (lambda t: t.to(torch.bfloat16) if t.is_floating_point() else t)(torch.as_tensor(a))
    B, Hq, Hkv, T, C, D = (2, 32, 4, 1, 16384, 128)
    tree_mask = torch.zeros((B, T, T), dtype=float)
    for b in range(B):
        parent = torch.zeros(T, dtype=torch.int64)
        for i in range(1, T):
            parent[i] = int(torch.randint(0, i, (1,)).item())
        for i in range(T):
            j = i
            tree_mask[b, i, j] = 1.0
            while j > 0:
                j = parent[j]
                tree_mask[b, i, j] = 1.0
    return {'q': _w((lambda *s: torch.randn(*s, dtype=torch.bfloat16) * 0.8)(B, Hq, T, D)), 'k_cache': _w((lambda *s: torch.randn(*s, dtype=torch.bfloat16) * 0.8)(B, Hkv, C, D)), 'v_cache': _w((lambda *s: torch.randn(*s, dtype=torch.bfloat16) * 0.05)(B, Hkv, C, D)), 'k_tree': _w((lambda *s: torch.randn(*s, dtype=torch.bfloat16) * 0.8)(B, Hkv, T, D)), 'v_tree': _w((lambda *s: torch.randn(*s, dtype=torch.bfloat16) * 0.05)(B, Hkv, T, D)), 'tree_mask': _w(tree_mask)}

def reference(q, k_cache, v_cache, k_tree, v_tree, tree_mask):
    B, Hq, T, D = q.shape
    Hkv, C = (k_cache.shape[1], k_cache.shape[2])
    rep = Hq // Hkv
    kc = (lambda x, n, axis: torch.repeat_interleave(x, n, dim=axis))(k_cache, rep, axis=1)
    vc = (lambda x, n, axis: torch.repeat_interleave(x, n, dim=axis))(v_cache, rep, axis=1)
    kt = (lambda x, n, axis: torch.repeat_interleave(x, n, dim=axis))(k_tree, rep, axis=1)
    vt = (lambda x, n, axis: torch.repeat_interleave(x, n, dim=axis))(v_tree, rep, axis=1)
    k = torch.concatenate([kc, kt], axis=2)
    v = torch.concatenate([vc, vt], axis=2)
    scale = D ** (-0.5)
    scores = torch.einsum('bhqd,bhkd->bhqk', q, k) * scale
    ctx_mask = torch.ones((B, 1, T, C), dtype=scores.dtype)
    tm = tree_mask[:, None, :, :].clone()
    full_mask = torch.concatenate([ctx_mask, tm], axis=-1)
    scores = scores + (1.0 - full_mask) * -1000000000.0
    p = _softmax(scores, axis=-1)
    return torch.einsum('bhqk,bhkd->bhqd', p, v)
```

```python
import sys, struct, math

NAME = "standalone__tree_speculative_verify_tree_attention_over_candidate_token_tree__decode"
REF = open(f"cdna_kernels/{NAME}.s.ref").read().split("\n")
HDR = []
for ln in REF:
    if ln.startswith("; Override launch") or ln.startswith("; grid=ceil") or ln.startswith("; @launch"):
        continue
    if ln.startswith(";"):
        HDR.append(ln)
    else:
        break

def f32(x):
    return "0x%08x" % struct.unpack("<I", struct.pack("<f", x))[0]

LOG2E = 1.4426950408889634
CSC = (128 ** -0.5) * LOG2E

class A:
    def __init__(s):
        s.l = []
    def __call__(s, x):
        s.l.append("    " + x)
    def lab(s, x):
        s.l.append(x + ":")
    def txt(s):
        return "\n".join(s.l) + "\n"

def vr(b, n=4):
    return f"v[{b}:{b+n-1}]"

def desc(name, nv, ns=64):
    acc = (nv + 3) // 4 * 4
    return f""".amdhsa_kernel {name}
  .amdhsa_next_free_vgpr {nv}
  .amdhsa_next_free_sgpr {ns}
  .amdhsa_accum_offset {acc}
  .amdhsa_group_segment_fixed_size 0
  .amdhsa_kernarg_size 72
  .amdhsa_user_sgpr_count 2
  .amdhsa_user_sgpr_kernarg_segment_ptr 1
  .amdhsa_system_sgpr_workgroup_id_x 1
.end_amdhsa_kernel
"""

ML_OFF = 256 * 4096
WS_SIZE = ML_OFF + 64 * 32 * 8
LDS_M = 32768
LDS_L = 32768 + 256
LDS1 = 32768 + 512

def k1(opt):
    a = A()
    nt = " nt" if opt.get("nt", True) else ""
    Q, K, V, S, P, VT0, ACC, VT1 = 8, 24, 88, 152, 168, 24, 56, 176
    a("s_cmp_ge_u32 s2, 256")
    a("s_cbranch_scc1 k1_end")
    a("s_load_dwordx2 s[24:25], s[0:1], 0")
    a("s_load_dwordx2 s[28:29], s[0:1], 8")
    a("s_load_dwordx2 s[32:33], s[0:1], 16")
    a("s_load_dwordx2 s[36:37], s[0:1], 64")
    a("v_lshrrev_b32 v1, 6, v0")
    a("v_and_b32 v2, 63, v0")
    a("v_readfirstlane_b32 s3, v1")
    a("v_bfe_u32 v4, v0, 4, 2")
    a("v_and_b32 v5, 3, v0")
    a("v_lshlrev_b32 v5, 10, v5")
    a("v_bfe_u32 v6, v0, 2, 2")
    a("v_lshl_or_b32 v5, v6, 8, v5")
    a("v_lshl_or_b32 v5, v4, 4, v5")
    a("v_lshlrev_b32 v6, 4, v2")
    a("v_and_b32 v3, 7, v0")
    a("v_lshlrev_b32 v7, 8, v3")
    a("v_lshl_or_b32 v7, v4, 4, v7")
    a("s_mov_b32 s26, 16384")
    a("s_mov_b32 s27, 0x00020000")
    a("s_mov_b32 s30, 0x02000000")
    a("s_mov_b32 s31, 0x00020000")
    a("s_mov_b32 s34, 0x02000000")
    a("s_mov_b32 s35, 0x00020000")
    a("s_lshl_b32 s40, s2, 17")
    a("s_lshl_b32 s41, s3, 14")
    a("s_add_u32 s40, s40, s41")
    a("s_add_u32 s41, s40, 4096")
    a("s_add_u32 s42, s40, 8192")
    a("s_add_u32 s43, s40, 12288")
    a("s_lshr_b32 s44, s2, 5")
    a("s_lshl_b32 s45, s44, 11")
    a("s_waitcnt lgkmcnt(0)")
    for c in range(4):
        a(f"buffer_load_dwordx4 {vr(Q+4*c)}, v7, s[24:27], s45 offen offset:{64*c}")
    for t in range(4):
        for c in range(4):
            a(f"buffer_load_dwordx4 {vr(K+16*t+4*c)}, v5, s[28:31], s{40+t} offen offset:{64*c}{nt}")
    for G in range(2):
        for j in range(8):
            a(f"buffer_load_dwordx4 {vr(V+32*G+4*j)}, v6, s[32:35], s{40+2*G+(j>>2)} offen offset:{1024*(j&3)}{nt}")
    a(f"s_mov_b32 s38, {WS_SIZE}")
    a("s_mov_b32 s39, 0x00020000")
    a(f"s_mov_b32 s46, {f32(CSC)}")
    a("s_mov_b32 s47, 0x05040100")
    a("s_mov_b32 s48, 0x07060302")
    a("v_lshlrev_b32 v208, 5, v3")
    a("v_lshl_add_u32 v209, v1, 2, v208")
    a("v_lshl_add_u32 v210, v3, 1, v4")
    a("v_lshlrev_b32 v211, 12, v1")
    a("v_lshl_add_u32 v211, v3, 9, v211")
    for h in range(4):
        a(f"v_add_u32 v{212+h}, {4*h}, v210")
        a(f"v_and_b32 v{212+h}, 15, v{212+h}")
        a(f"v_lshl_add_u32 v{212+h}, v{212+h}, 4, v211")
    a("v_and_b32 v216, 3, v0")
    a("v_lshl_add_u32 v216, v216, 2, v4")
    a("v_lshl_add_u32 v216, v1, 1, v216")
    a("v_and_b32 v216, 15, v216")
    a("v_lshlrev_b32 v216, 4, v216")
    a("v_and_b32 v217, 12, v0")
    a("v_add_u32 v216, v216, v217")
    a("v_lshl_add_u32 v216, v1, 9, v216")
    a("v_lshlrev_b32 v217, 3, v0")
    a("s_lshl_b32 s49, s2, 12")
    a("v_lshlrev_b32 v218, 8, v3")
    a("s_and_b32 s50, s2, 31")
    a("s_lshl_b32 s50, s50, 3")
    a("s_add_u32 s50, s50, s45")
    a(f"s_add_u32 s50, s50, {ML_OFF}")
    for t in range(4):
        a(f"s_waitcnt vmcnt({28-4*t})")
        for c in range(4):
            cc = "0" if c == 0 else vr(S+4*t)
            a(f"v_mfma_f32_16x16x32_bf16 {vr(S+4*t)}, {vr(K+16*t+4*c)}, {vr(Q+4*c)}, {cc}")
    a("s_nop 7")
    X, Y = 220, 221
    a(f"v_max3_f32 v{X}, v{S}, v{S+1}, v{S+2}")
    for i in range(3, 15, 2):
        a(f"v_max3_f32 v{X}, v{X}, v{S+i}, v{S+i+1}")
    a(f"v_max_f32 v{X}, v{X}, v{S+15}")
    for sw in ("16", "32"):
        a(f"v_mov_b32 v{Y}, v{X}")
        a("s_nop 1")
        a(f"v_permlane{sw}_swap_b32 v{X}, v{Y}")
        a(f"v_max_f32 v{X}, v{X}, v{Y}")
    a("s_mov_b64 exec, 0xff")
    a(f"ds_write_b32 v209, v{X} offset:{LDS_M}")
    a("s_mov_b64 exec, -1")
    a("s_waitcnt lgkmcnt(0)")
    a("s_barrier")
    T = 224
    a(f"ds_read_b128 {vr(T)}, v208 offset:{LDS_M}")
    a(f"ds_read_b128 {vr(T+4)}, v208 offset:{LDS_M+16}")
    a("s_waitcnt lgkmcnt(0)")
    a(f"v_max3_f32 v{X}, v{T}, v{T+1}, v{T+2}")
    a(f"v_max3_f32 v{X}, v{X}, v{T+3}, v{T+4}")
    a(f"v_max3_f32 v{X}, v{X}, v{T+5}, v{T+6}")
    a(f"v_max_f32 v{X}, v{X}, v{T+7}")
    MC = 222
    a(f"v_mul_f32 v{MC}, s46, v{X}")
    for i in range(16):
        a(f"v_fma_f32 v{S+i}, v{S+i}, s46, -v{MC}")
    for i in range(16):
        a(f"v_exp_f32 v{S+i}, v{S+i}")
    a("s_nop 0")
    for G in range(2):
        for q in range(4):
            s0 = S + 8*G + 2*q
            a(f"v_cvt_pk_bf16_f32 v{P+4*G+q}, v{s0}, v{s0+1}")
    a(f"v_add_f32 v{X}, v{S}, v{S+1}")
    for i in range(2, 16):
        a(f"v_add_f32 v{X}, v{X}, v{S+i}")
    for sw in ("16", "32"):
        a(f"v_mov_b32 v{Y}, v{X}")
        a("s_nop 1")
        a(f"v_permlane{sw}_swap_b32 v{X}, v{Y}")
        a(f"v_add_f32 v{X}, v{X}, v{Y}")
    a("s_mov_b64 exec, 0xff")
    a(f"ds_write_b32 v209, v{X} offset:{LDS_L}")
    a("s_mov_b64 exec, -1")
    for G in range(2):
        VT = VT0 if G == 0 else VT1
        W = V + 32*G
        for aa in range(4):
            a(f"s_waitcnt vmcnt({14 - 8*G - 2*aa})")
            for i in range(8):
                q = i >> 1
                sel = "s47" if (i & 1) == 0 else "s48"
                a(f"v_perm_b32 v{VT+4*i+aa}, v{W+4*(2*aa+1)+q}, v{W+4*(2*aa)+q}, {sel}")
                if aa == 3 and i >= 2:
                    ii = i - 2
                    cc = "0" if G == 0 else vr(ACC+4*ii)
                    a(f"v_mfma_f32_16x16x32_bf16 {vr(ACC+4*ii)}, {vr(VT+4*ii)}, {vr(P+4*G)}, {cc}")
        a("s_nop 0")
        for ii in (6, 7):
            cc = "0" if G == 0 else vr(ACC+4*ii)
            a(f"v_mfma_f32_16x16x32_bf16 {vr(ACC+4*ii)}, {vr(VT+4*ii)}, {vr(P+4*G)}, {cc}")
    a("s_mov_b32 exec_lo, 0x00ff00ff")
    a("s_mov_b32 exec_hi, 0x00ff00ff")
    for i in range(8):
        if i == 0:
            a("s_nop 1")
        if i == 6:
            a("s_nop 1")
        a(f"ds_write_b128 v{212+(i>>1)}, {vr(ACC+4*i)} offset:{256*(i&1)}")
    a("s_mov_b64 exec, -1")
    a("s_waitcnt lgkmcnt(0)")
    a("s_barrier")
    R = 24
    a("s_cmp_lg_u32 s3, 0")
    a("s_cbranch_scc1 k1_noml")
    a(f"ds_read_b128 {vr(T)}, v208 offset:{LDS_L}")
    a(f"ds_read_b128 {vr(T+4)}, v208 offset:{LDS_L+16}")
    a.lab("k1_noml")
    for w in range(8):
        a(f"ds_read2st64_b32 v[{R+2*w}:{R+2*w+1}], v216 offset0:{16*w} offset1:{16*w+1}")
    for w in range(1, 8):
        a(f"s_waitcnt lgkmcnt({7-w})")
        a(f"v_add_f32 v{R}, v{R}, v{R+2*w}")
        a(f"v_add_f32 v{R+1}, v{R+1}, v{R+2*w+1}")
    a(f"buffer_store_dwordx2 v[{R}:{R+1}], v217, s[36:39], s49 offen")
    a("s_cbranch_scc1 k1_end")
    a(f"v_add_f32 v{MC+1}, v{T}, v{T+1}")
    for i in range(2, 8):
        a(f"v_add_f32 v{MC+1}, v{MC+1}, v{T+i}")
    a("s_mov_b64 exec, 0xff")
    a(f"buffer_store_dwordx2 v[{MC}:{MC+1}], v218, s[36:39], s50 offen")
    a.lab("k1_end")
    a("s_endpgm")
    return a.txt(), 232

def k2(opt):
    a = A()
    a("s_cmp_ge_u32 s2, 64")
    a("s_cbranch_scc1 k2_end")
    a("s_load_dwordx2 s[24:25], s[0:1], 0")
    a("s_load_dwordx2 s[28:29], s[0:1], 24")
    a("s_load_dwordx2 s[32:33], s[0:1], 32")
    a("s_load_dwordx2 s[36:37], s[0:1], 64")
    a("s_load_dwordx4 s[4:7], s[0:1], 40")
    a("v_lshrrev_b32 v1, 6, v0")
    a("v_and_b32 v2, 63, v0")
    a("v_bfe_u32 v3, v0, 3, 3")
    a("v_and_b32 v4, 7, v0")
    a("v_lshlrev_b32 v5, 2, v2")
    a("v_lshlrev_b32 v6, 6, v1")
    a("v_lshl_add_u32 v6, v4, 3, v6")
    a("v_lshlrev_b32 v7, 5, v3")
    a("v_lshlrev_b32 v8, 14, v3")
    a("v_lshl_add_u32 v8, v6, 1, v8")
    a("s_mov_b32 s26, 16384")
    a("s_mov_b32 s27, 0x00020000")
    a("s_mov_b32 s30, 2048")
    a("s_mov_b32 s31, 0x00020000")
    a("s_mov_b32 s34, 2048")
    a("s_mov_b32 s35, 0x00020000")
    a(f"s_mov_b32 s38, {WS_SIZE}")
    a("s_mov_b32 s39, 0x00020000")
    a("s_lshr_b32 s44, s2, 3")
    a("s_and_b32 s45, s2, 7")
    a("s_lshl_b32 s40, s2, 8")
    a("s_lshl_b32 s41, s44, 8")
    a(f"s_add_u32 s42, s40, {ML_OFF}")
    a("s_lshl_b32 s43, s44, 17")
    a("s_lshl_b32 s45, s45, 9")
    a("s_add_u32 s43, s43, s45")
    a("s_add_u32 s50, s43, 4096")
    a("s_add_u32 s51, s43, 8192")
    a("s_add_u32 s52, s43, 12288")
    a("s_waitcnt lgkmcnt(0)")
    a("s_load_dword s46, s[4:5], 0")
    ML, O, TQ, TK, TV = 12, 20, 36, 37, 38
    a(f"buffer_load_dword v{TQ}, v5, s[24:27], s40 offen")
    a(f"buffer_load_dword v{TK}, v5, s[28:31], s41 offen")
    a(f"buffer_load_dwordx4 {vr(ML)}, v7, s[36:39], s42 offen")
    a(f"buffer_load_dwordx4 {vr(ML+4)}, v7, s[36:39], s42 offen offset:16")
    for q, sr in enumerate(("s43", "s50", "s51", "s52")):
        a(f"buffer_load_dwordx4 {vr(O+4*q)}, v8, s[36:39], {sr} offen")
    a(f"buffer_load_dwordx2 v[{TV}:{TV+1}], v6, s[32:35], s41 offen")
    a("s_mov_b32 s8, s6")
    a("s_mov_b32 s9, s7")
    a("s_mov_b32 s10, 16384")
    a("s_mov_b32 s11, 0x00020000")
    a(f"s_mov_b32 s47, {f32(CSC)}")
    a(f"s_mov_b32 s48, {f32(-1e9*LOG2E)}")
    a("s_waitcnt lgkmcnt(0)")
    a("s_lshl_b32 s49, s46, 16")
    a("s_and_b32 s46, s46, 0xffff0000")
    a("s_cmp_ge_u32 s44, 4")
    a("s_cselect_b32 s46, s46, s49")
    a("v_sub_f32 v40, 1.0, s46") if False else None
    a("v_mov_b32 v40, s46")
    a("v_sub_f32 v40, 1.0, v40")
    a("v_mul_f32 v40, s48, v40")
    a("s_waitcnt vmcnt(7)")
    a(f"v_lshlrev_b32 v41, 16, v{TQ}")
    a(f"v_lshlrev_b32 v42, 16, v{TK}")
    a(f"v_and_b32 v43, 0xffff0000, v{TQ}")
    a(f"v_and_b32 v44, 0xffff0000, v{TK}")
    a("v_mul_f32 v41, v41, v42")
    a("v_fma_f32 v41, v43, v44, v41")
    for d in ("quad_perm:[1,0,3,2]", "quad_perm:[2,3,0,1]", "row_half_mirror", "row_mirror"):
        a("s_nop 1")
        a(f"v_add_f32 v41, v41, v41 {d}")
    for sw in ("16", "32"):
        a("v_mov_b32 v42, v41")
        a("s_nop 1")
        a(f"v_permlane{sw}_swap_b32 v41, v42")
        a("v_add_f32 v41, v41, v42")
    a("v_fma_f32 v40, v41, s47, v40")
    a("s_waitcnt vmcnt(5)")
    a(f"v_max3_f32 v45, v{ML}, v{ML+2}, v{ML+4}")
    a(f"v_max3_f32 v45, v45, v{ML+6}, v40")
    a("s_nop 1")
    a("v_max_f32 v45, v45, v45 row_ror:8")
    for sw in ("16", "32"):
        a("v_mov_b32 v46, v45")
        a("s_nop 1")
        a(f"v_permlane{sw}_swap_b32 v45, v46")
        a("v_max_f32 v45, v45, v46")
    for q in range(4):
        a(f"v_sub_f32 v{ML+2*q}, v{ML+2*q}, v45")
    a("v_sub_f32 v40, v40, v45")
    for q in range(4):
        a(f"v_exp_f32 v{ML+2*q}, v{ML+2*q}")
    a("v_exp_f32 v40, v40")
    a(f"v_mul_f32 v50, v{ML}, v{ML+1}")
    for q in range(1, 4):
        a(f"v_fma_f32 v50, v{ML+2*q}, v{ML+2*q+1}, v50")
    for q in range(4):
        a(f"s_waitcnt vmcnt({4-q})")
        for e in range(4):
            if q == 0:
                a(f"v_mul_f32 v{46+e}, v{ML}, v{O+e}")
            else:
                a(f"v_fma_f32 v{46+e}, v{ML+2*q}, v{O+4*q+e}, v{46+e}")
    a("s_nop 1")
    for e in (50, 46, 47, 48, 49):
        a(f"v_add_f32 v{e}, v{e}, v{e} row_ror:8")
    for sw in ("16", "32"):
        for e in range(5):
            a(f"v_mov_b32 v{52+e}, v{46+e}")
        a("s_nop 1")
        for e in range(5):
            a(f"v_permlane{sw}_swap_b32 v{46+e}, v{52+e}")
        for e in range(5):
            a(f"v_add_f32 v{46+e}, v{46+e}, v{52+e}")
    a("v_add_f32 v50, v50, v40")
    a("v_rcp_f32 v50, v50")
    a("s_waitcnt vmcnt(0)")
    a(f"v_lshlrev_b32 v52, 16, v{TV}")
    a(f"v_and_b32 v53, 0xffff0000, v{TV}")
    a(f"v_lshlrev_b32 v54, 16, v{TV+1}")
    a(f"v_and_b32 v55, 0xffff0000, v{TV+1}")
    for e in range(4):
        a(f"v_fma_f32 v{46+e}, v40, v{52+e}, v{46+e}")
    for e in range(4):
        a(f"v_mul_f32 v{46+e}, v{46+e}, v50")
    a("v_cvt_pk_bf16_f32 v46, v46, v47")
    a("v_cvt_pk_bf16_f32 v47, v48, v49")
    a("s_mov_b64 exec, 0xff")
    a("buffer_store_dwordx2 v[46:47], v6, s[8:11], s40 offen")
    a.lab("k2_end")
    a("s_endpgm")
    return a.txt(), 64

def build(opt):
    n1 = NAME + "_kernel"
    n2 = "combine_kernel"
    t1, nv1 = k1(opt)
    t2, nv2 = k2(opt)
    s = "\n".join(HDR) + "\n"
    s += f"; @launch kernel={n1} grid=(256,1,1) block=(512,1,1) lds={LDS1}\n"
    s += f"; @launch kernel={n2} grid=(64,1,1) block=(256,1,1) lds=0\n"
    s += '.amdgcn_target "amdgcn-amd-amdhsa--gfx950"\n.text\n'
    for n, t in ((n1, t1), (n2, t2)):
        s += f".globl {n}\n.p2align 8\n.type {n},@function\n{n}:\n" + t
    s += '.section .rodata,"a"\n.p2align 6\n' + desc(n1, nv1)
    s += '.p2align 6\n' + desc(n2, nv2)
    return s

if __name__ == "__main__":
    opt = {}
    out = f"cdna_kernels/{NAME}.s"
    for x in sys.argv[1:]:
        k, v = x.split("=")
        if k == "out":
            out = v
        else:
            opt[k] = int(v)
    open(out, "w").write(build(opt))
```

```python
import sys, struct, math

NAME = "standalone__tree_speculative_verify_tree_attention_over_candidate_token_tree__decode"
REF = open(f"cdna_kernels/{NAME}.s.ref").read().split("\n")
HDR = []
for ln in REF:
    if ln.startswith("; Override launch") or ln.startswith("; grid=ceil") or ln.startswith("; @launch"):
        continue
    if ln.startswith(";"):
        HDR.append(ln)
    else:
        break

def f32(x):
    return "0x%08x" % struct.unpack("<I", struct.pack("<f", x))[0]

LOG2E = 1.4426950408889634
CSC = (128 ** -0.5) * LOG2E

class A:
    def __init__(s):
        s.l = []
    def __call__(s, x):
        s.l.append("    " + x)
    def lab(s, x):
        s.l.append(x + ":")
    def txt(s):
        return "\n".join(s.l) + "\n"

def vr(b, n=4):
    return f"v[{b}:{b+n-1}]"

def desc(name, nv, ns=80):
    acc = (nv + 3) // 4 * 4
    return f""".amdhsa_kernel {name}
  .amdhsa_next_free_vgpr {nv}
  .amdhsa_next_free_sgpr {ns}
  .amdhsa_accum_offset {acc}
  .amdhsa_group_segment_fixed_size 0
  .amdhsa_kernarg_size 72
  .amdhsa_user_sgpr_count 2
  .amdhsa_user_sgpr_kernarg_segment_ptr 1
  .amdhsa_system_sgpr_workgroup_id_x 1
.end_amdhsa_kernel
"""

ML_OFF = 256 * 4096
WS_SIZE = ML_OFF + 64 * 32 * 8
LDS_M = 32768
LDS_L = 32768 + 256
LDS1 = 32768 + 512

def k1(opt):
    a = A()
    nt = " nt" if opt.get("nt", True) else ""
    Q, K, V, S, P, VT0, ACC, VT1 = 8, 24, 88, 152, 168, 24, 56, 176
    prof = opt.get("prof", 0)
    def ts(i):
        if prof:
            a(f"s_memrealtime s[{60+2*i}:{61+2*i}]")
    ts(0)
    dbg = opt.get("dbgts", 0)
    if dbg:
        a("s_memrealtime s[60:61]")
    a("s_cmp_ge_u32 s2, 256")
    a("s_cbranch_scc1 k1_end")
    if dbg:
        a("s_load_dwordx2 s[64:65], s[0:1], 56")
    a("s_load_dwordx2 s[24:25], s[0:1], 0")
    a("s_load_dwordx2 s[28:29], s[0:1], 8")
    a("s_load_dwordx2 s[32:33], s[0:1], 16")
    a("s_load_dwordx2 s[36:37], s[0:1], 64")
    a("v_lshrrev_b32 v1, 6, v0")
    a("v_and_b32 v2, 63, v0")
    a("v_readfirstlane_b32 s3, v1")
    a("v_bfe_u32 v4, v0, 4, 2")
    a("v_and_b32 v5, 3, v0")
    a("v_lshlrev_b32 v5, 10, v5")
    a("v_bfe_u32 v6, v0, 2, 2")
    a("v_lshl_or_b32 v5, v6, 8, v5")
    a("v_lshl_or_b32 v5, v4, 4, v5")
    a("v_lshlrev_b32 v6, 4, v2")
    a("v_and_b32 v3, 7, v0")
    a("v_lshlrev_b32 v7, 8, v3")
    a("v_lshl_or_b32 v7, v4, 4, v7")
    a("s_mov_b32 s26, 16384")
    a("s_mov_b32 s27, 0x00020000")
    a("s_mov_b32 s30, 0x02000000")
    a("s_mov_b32 s31, 0x00020000")
    a("s_mov_b32 s34, 0x02000000")
    a("s_mov_b32 s35, 0x00020000")
    a("s_lshl_b32 s40, s2, 17")
    a("s_lshl_b32 s41, s3, 14")
    a("s_add_u32 s40, s40, s41")
    a("s_add_u32 s41, s40, 4096")
    a("s_add_u32 s42, s40, 8192")
    a("s_add_u32 s43, s40, 12288")
    a("s_lshr_b32 s44, s2, 5")
    a("s_lshl_b32 s45, s44, 11")
    a("s_waitcnt lgkmcnt(0)")
    ts(1)
    for c in range(4):
        a(f"buffer_load_dwordx4 {vr(Q+4*c)}, v7, s[24:27], s45 offen offset:{64*c}")
    for t in range(4):
        for c in range(4):
            a(f"buffer_load_dwordx4 {vr(K+16*t+4*c)}, v5, s[28:31], s{40+t} offen offset:{64*c}{nt}")
    for G in range(2):
        for j in range(8):
            a(f"buffer_load_dwordx4 {vr(V+32*G+4*j)}, v6, s[32:35], s{40+2*G+(j>>2)} offen offset:{1024*(j&3)}{nt}")
    ts(2)
    a(f"s_mov_b32 s38, {WS_SIZE if not prof else (16<<20)}")
    a("s_mov_b32 s39, 0x00020000")
    a(f"s_mov_b32 s46, {f32(CSC)}")
    a("s_mov_b32 s47, 0x05040100")
    a("s_mov_b32 s48, 0x07060302")
    a("v_lshlrev_b32 v208, 5, v3")
    a("v_lshl_add_u32 v209, v1, 2, v208")
    a("v_lshl_add_u32 v210, v3, 1, v4")
    a("v_lshlrev_b32 v211, 12, v1")
    a("v_lshl_add_u32 v211, v3, 9, v211")
    for h in range(4):
        a(f"v_add_u32 v{212+h}, {4*h}, v210")
        a(f"v_and_b32 v{212+h}, 15, v{212+h}")
        a(f"v_lshl_add_u32 v{212+h}, v{212+h}, 4, v211")
    a("v_and_b32 v216, 3, v0")
    a("v_lshl_add_u32 v216, v216, 2, v4")
    a("v_lshl_add_u32 v216, v1, 1, v216")
    a("v_and_b32 v216, 15, v216")
    a("v_lshlrev_b32 v216, 4, v216")
    a("v_and_b32 v217, 12, v0")
    a("v_add_u32 v216, v216, v217")
    a("v_lshl_add_u32 v216, v1, 9, v216")
    a("v_lshlrev_b32 v217, 3, v0")
    a("s_lshl_b32 s49, s2, 12")
    a("v_lshlrev_b32 v218, 8, v3")
    a("s_and_b32 s50, s2, 31")
    a("s_lshl_b32 s50, s50, 3")
    a("s_add_u32 s50, s50, s45")
    a(f"s_add_u32 s50, s50, {ML_OFF}")
    for t in range(4):
        a(f"s_waitcnt vmcnt({28-4*t})")
        for c in range(4):
            cc = "0" if c == 0 else vr(S+4*t)
            a(f"v_mfma_f32_16x16x32_bf16 {vr(S+4*t)}, {vr(K+16*t+4*c)}, {vr(Q+4*c)}, {cc}")
    ts(3)
    a("s_nop 7")
    X, Y = 220, 221
    a(f"v_max3_f32 v{X}, v{S}, v{S+1}, v{S+2}")
    for i in range(3, 15, 2):
        a(f"v_max3_f32 v{X}, v{X}, v{S+i}, v{S+i+1}")
    a(f"v_max_f32 v{X}, v{X}, v{S+15}")
    for sw in ("16", "32"):
        a(f"v_mov_b32 v{Y}, v{X}")
        a("s_nop 1")
        a(f"v_permlane{sw}_swap_b32 v{X}, v{Y}")
        a(f"v_max_f32 v{X}, v{X}, v{Y}")
    a("s_mov_b64 exec, 0xff")
    a(f"ds_write_b32 v209, v{X} offset:{LDS_M}")
    a("s_mov_b64 exec, -1")
    a("s_waitcnt lgkmcnt(0)")
    a("s_barrier")
    T = 224
    a(f"ds_read_b128 {vr(T)}, v208 offset:{LDS_M}")
    a(f"ds_read_b128 {vr(T+4)}, v208 offset:{LDS_M+16}")
    a("s_waitcnt lgkmcnt(0)")
    a(f"v_max3_f32 v{X}, v{T}, v{T+1}, v{T+2}")
    a(f"v_max3_f32 v{X}, v{X}, v{T+3}, v{T+4}")
    a(f"v_max3_f32 v{X}, v{X}, v{T+5}, v{T+6}")
    a(f"v_max_f32 v{X}, v{X}, v{T+7}")
    MC = 222
    a(f"v_mul_f32 v{MC}, s46, v{X}")
    for i in range(16):
        a(f"v_fma_f32 v{S+i}, v{S+i}, s46, -v{MC}")
    for i in range(16):
        a(f"v_exp_f32 v{S+i}, v{S+i}")
    a("s_nop 0")
    for G in range(2):
        for q in range(4):
            s0 = S + 8*G + 2*q
            a(f"v_cvt_pk_bf16_f32 v{P+4*G+q}, v{s0}, v{s0+1}")
    a(f"v_add_f32 v{X}, v{S}, v{S+1}")
    for i in range(2, 16):
        a(f"v_add_f32 v{X}, v{X}, v{S+i}")
    for sw in ("16", "32"):
        a(f"v_mov_b32 v{Y}, v{X}")
        a("s_nop 1")
        a(f"v_permlane{sw}_swap_b32 v{X}, v{Y}")
        a(f"v_add_f32 v{X}, v{X}, v{Y}")
    a("s_mov_b64 exec, 0xff")
    a(f"ds_write_b32 v209, v{X} offset:{LDS_L}")
    a("s_mov_b64 exec, -1")
    for G in range(2):
        VT = VT0 if G == 0 else VT1
        W = V + 32*G
        for aa in range(4):
            a(f"s_waitcnt vmcnt({14 - 8*G - 2*aa})")
            for i in range(8):
                q = i >> 1
                sel = "s47" if (i & 1) == 0 else "s48"
                a(f"v_perm_b32 v{VT+4*i+aa}, v{W+4*(2*aa+1)+q}, v{W+4*(2*aa)+q}, {sel}")
                if aa == 3 and i >= 2:
                    ii = i - 2
                    cc = "0" if G == 0 else vr(ACC+4*ii)
                    a(f"v_mfma_f32_16x16x32_bf16 {vr(ACC+4*ii)}, {vr(VT+4*ii)}, {vr(P+4*G)}, {cc}")
        a("s_nop 0")
        for ii in (6, 7):
            cc = "0" if G == 0 else vr(ACC+4*ii)
            a(f"v_mfma_f32_16x16x32_bf16 {vr(ACC+4*ii)}, {vr(VT+4*ii)}, {vr(P+4*G)}, {cc}")
    ts(4)
    a("s_mov_b32 exec_lo, 0x00ff00ff")
    a("s_mov_b32 exec_hi, 0x00ff00ff")
    for i in range(8):
        if i == 0:
            a("s_nop 1")
        if i == 6:
            a("s_nop 1")
        a(f"ds_write_b128 v{212+(i>>1)}, {vr(ACC+4*i)} offset:{256*(i&1)}")
    a("s_mov_b64 exec, -1")
    a("s_waitcnt lgkmcnt(0)")
    a("s_barrier")
    R = 24
    a("s_cmp_lg_u32 s3, 0")
    a("s_cbranch_scc1 k1_noml")
    a(f"ds_read_b128 {vr(T)}, v208 offset:{LDS_L}")
    a(f"ds_read_b128 {vr(T+4)}, v208 offset:{LDS_L+16}")
    a.lab("k1_noml")
    for w in range(8):
        a(f"ds_read2st64_b32 v[{R+2*w}:{R+2*w+1}], v216 offset0:{16*w} offset1:{16*w+1}")
    for w in range(1, 8):
        a(f"s_waitcnt lgkmcnt({7-w})")
        a(f"v_add_f32 v{R}, v{R}, v{R+2*w}")
        a(f"v_add_f32 v{R+1}, v{R+1}, v{R+2*w+1}")
    a(f"buffer_store_dwordx2 v[{R}:{R+1}], v217, s[36:39], s49 offen")
    a("s_cbranch_scc1 k1_fin")
    a(f"v_add_f32 v{MC+1}, v{T}, v{T+1}")
    for i in range(2, 8):
        a(f"v_add_f32 v{MC+1}, v{MC+1}, v{T+i}")
    a("s_mov_b64 exec, 0xff")
    a(f"buffer_store_dwordx2 v[{MC}:{MC+1}], v218, s[36:39], s50 offen")
    a.lab("k1_fin")
    if dbg:
        a("s_waitcnt vmcnt(0)")
        a("s_memrealtime s[62:63]")
        a("s_mov_b32 s66, 256")
        a("s_mov_b32 s67, 0x00020000")
        a("s_waitcnt lgkmcnt(0)")
        a("s_mov_b64 exec, 1")
        a("s_not_b32 s61, s60")
        a("v_mov_b32 v100, s61")
        a("v_mov_b32 v101, s62")
        a("v_mov_b32 v102, s60")
        a("v_mov_b32 v99, 0")
        a("s_lshl_b32 s51, s2, 3")
        a("s_add_u32 s51, s51, s3")
        a("s_lshl_b32 s51, s51, 3")
        a(f"s_add_u32 s51, s51, {8<<20}")
        a(f"s_mov_b32 s38, {16<<20}")
        a("buffer_store_dwordx2 v[100:101], v99, s[36:39], s51 offen")
    if prof:
        a("s_waitcnt vmcnt(0)")
        ts(5)
        a("s_waitcnt lgkmcnt(0)")
        a("s_mov_b64 exec, 1")
        for i in range(12):
            a(f"v_mov_b32 v{100+i}, s{60+i}")
        a("s_lshl_b32 s51, s2, 3")
        a("s_add_u32 s51, s51, s3")
        a("s_lshl_b32 s51, s51, 6")
        a(f"s_add_u32 s51, s51, {8<<20}")
        a("v_mov_b32 v99, 0")
        for i in range(3):
            a(f"buffer_store_dwordx4 v[{100+4*i}:{103+4*i}], v99, s[36:39], s51 offen offset:{16*i}")
    a.lab("k1_end")
    a("s_endpgm")
    return a.txt(), 232

def k2(opt):
    a = A()
    dbg = opt.get("dbgts", 0) == 1
    if dbg:
        a("s_memrealtime s[60:61]")
    a("s_cmp_ge_u32 s2, 64")
    a("s_cbranch_scc1 k2_end")
    if dbg:
        a("s_load_dwordx2 s[64:65], s[0:1], 56")
    a("s_load_dwordx2 s[24:25], s[0:1], 0")
    a("s_load_dwordx2 s[28:29], s[0:1], 24")
    a("s_load_dwordx2 s[32:33], s[0:1], 32")
    a("s_load_dwordx2 s[36:37], s[0:1], 64")
    a("s_load_dwordx4 s[4:7], s[0:1], 40")
    a("v_lshrrev_b32 v1, 6, v0")
    a("v_and_b32 v2, 63, v0")
    a("v_bfe_u32 v3, v0, 3, 3")
    a("v_and_b32 v4, 7, v0")
    a("v_lshlrev_b32 v5, 2, v2")
    a("v_lshlrev_b32 v6, 6, v1")
    a("v_lshl_add_u32 v6, v4, 3, v6")
    a("v_lshlrev_b32 v7, 5, v3")
    a("v_lshlrev_b32 v8, 14, v3")
    a("v_lshl_add_u32 v8, v6, 1, v8")
    a("s_mov_b32 s26, 16384")
    a("s_mov_b32 s27, 0x00020000")
    a("s_mov_b32 s30, 2048")
    a("s_mov_b32 s31, 0x00020000")
    a("s_mov_b32 s34, 2048")
    a("s_mov_b32 s35, 0x00020000")
    a(f"s_mov_b32 s38, {WS_SIZE}")
    a("s_mov_b32 s39, 0x00020000")
    a("s_lshr_b32 s44, s2, 3")
    a("s_and_b32 s45, s2, 7")
    a("s_lshl_b32 s40, s2, 8")
    a("s_lshl_b32 s41, s44, 8")
    a(f"s_add_u32 s42, s40, {ML_OFF}")
    a("s_lshl_b32 s43, s44, 17")
    a("s_lshl_b32 s45, s45, 9")
    a("s_add_u32 s43, s43, s45")
    a("s_add_u32 s50, s43, 4096")
    a("s_add_u32 s51, s43, 8192")
    a("s_add_u32 s52, s43, 12288")
    a("s_waitcnt lgkmcnt(0)")
    a("s_load_dword s46, s[4:5], 0")
    ML, O, TQ, TK, TV = 12, 20, 36, 37, 38
    a(f"buffer_load_dword v{TQ}, v5, s[24:27], s40 offen")
    a(f"buffer_load_dword v{TK}, v5, s[28:31], s41 offen")
    a(f"buffer_load_dwordx4 {vr(ML)}, v7, s[36:39], s42 offen")
    a(f"buffer_load_dwordx4 {vr(ML+4)}, v7, s[36:39], s42 offen offset:16")
    for q, sr in enumerate(("s43", "s50", "s51", "s52")):
        a(f"buffer_load_dwordx4 {vr(O+4*q)}, v8, s[36:39], {sr} offen")
    a(f"buffer_load_dwordx2 v[{TV}:{TV+1}], v6, s[32:35], s41 offen")
    a("s_mov_b32 s8, s6")
    a("s_mov_b32 s9, s7")
    a("s_mov_b32 s10, 16384")
    a("s_mov_b32 s11, 0x00020000")
    a(f"s_mov_b32 s47, {f32(CSC)}")
    a(f"s_mov_b32 s48, {f32(-1e9*LOG2E)}")
    a("s_waitcnt lgkmcnt(0)")
    a("s_lshl_b32 s49, s46, 16")
    a("s_and_b32 s46, s46, 0xffff0000")
    a("s_cmp_ge_u32 s44, 4")
    a("s_cselect_b32 s46, s46, s49")
    a("v_sub_f32 v40, 1.0, s46") if False else None
    a("v_mov_b32 v40, s46")
    a("v_sub_f32 v40, 1.0, v40")
    a("v_mul_f32 v40, s48, v40")
    a("s_waitcnt vmcnt(7)")
    a(f"v_lshlrev_b32 v41, 16, v{TQ}")
    a(f"v_lshlrev_b32 v42, 16, v{TK}")
    a(f"v_and_b32 v43, 0xffff0000, v{TQ}")
    a(f"v_and_b32 v44, 0xffff0000, v{TK}")
    a("v_mul_f32 v41, v41, v42")
    a("v_fma_f32 v41, v43, v44, v41")
    for d in ("quad_perm:[1,0,3,2]", "quad_perm:[2,3,0,1]", "row_half_mirror", "row_mirror"):
        a("s_nop 1")
        a(f"v_add_f32 v41, v41, v41 {d}")
    for sw in ("16", "32"):
        a("v_mov_b32 v42, v41")
        a("s_nop 1")
        a(f"v_permlane{sw}_swap_b32 v41, v42")
        a("v_add_f32 v41, v41, v42")
    a("v_fma_f32 v40, v41, s47, v40")
    a("s_waitcnt vmcnt(5)")
    a(f"v_max3_f32 v45, v{ML}, v{ML+2}, v{ML+4}")
    a(f"v_max3_f32 v45, v45, v{ML+6}, v40")
    a("s_nop 1")
    a("v_max_f32 v45, v45, v45 row_ror:8")
    for sw in ("16", "32"):
        a("v_mov_b32 v46, v45")
        a("s_nop 1")
        a(f"v_permlane{sw}_swap_b32 v45, v46")
        a("v_max_f32 v45, v45, v46")
    for q in range(4):
        a(f"v_sub_f32 v{ML+2*q}, v{ML+2*q}, v45")
    a("v_sub_f32 v40, v40, v45")
    for q in range(4):
        a(f"v_exp_f32 v{ML+2*q}, v{ML+2*q}")
    a("v_exp_f32 v40, v40")
    a(f"v_mul_f32 v50, v{ML}, v{ML+1}")
    for q in range(1, 4):
        a(f"v_fma_f32 v50, v{ML+2*q}, v{ML+2*q+1}, v50")
    for q in range(4):
        a(f"s_waitcnt vmcnt({4-q})")
        for e in range(4):
            if q == 0:
                a(f"v_mul_f32 v{46+e}, v{ML}, v{O+e}")
            else:
                a(f"v_fma_f32 v{46+e}, v{ML+2*q}, v{O+4*q+e}, v{46+e}")
    a("s_nop 1")
    for e in (50, 46, 47, 48, 49):
        a(f"v_add_f32 v{e}, v{e}, v{e} row_ror:8")
    for sw in ("16", "32"):
        for e in range(5):
            a(f"v_mov_b32 v{52+e}, v{46+e}")
        a("s_nop 1")
        for e in range(5):
            a(f"v_permlane{sw}_swap_b32 v{46+e}, v{52+e}")
        for e in range(5):
            a(f"v_add_f32 v{46+e}, v{46+e}, v{52+e}")
    a("v_add_f32 v50, v50, v40")
    a("v_rcp_f32 v50, v50")
    a("s_waitcnt vmcnt(0)")
    a(f"v_lshlrev_b32 v52, 16, v{TV}")
    a(f"v_and_b32 v53, 0xffff0000, v{TV}")
    a(f"v_lshlrev_b32 v54, 16, v{TV+1}")
    a(f"v_and_b32 v55, 0xffff0000, v{TV+1}")
    for e in range(4):
        a(f"v_fma_f32 v{46+e}, v40, v{52+e}, v{46+e}")
    for e in range(4):
        a(f"v_mul_f32 v{46+e}, v{46+e}, v50")
    a("v_cvt_pk_bf16_f32 v46, v46, v47")
    a("v_cvt_pk_bf16_f32 v47, v48, v49")
    a("s_mov_b64 exec, 0xff")
    a("buffer_store_dwordx2 v[46:47], v6, s[8:11], s40 offen")
    if dbg:
        a("s_waitcnt vmcnt(0)")
        a("s_memrealtime s[62:63]")
        a("s_mov_b32 s66, 256")
        a("s_mov_b32 s67, 0x00020000")
        a("s_waitcnt lgkmcnt(0)")
        a("s_mov_b64 exec, 1")
        a("s_not_b32 s61, s60")
        a("v_mov_b32 v10, s61")
        a("v_mov_b32 v11, s62")
        a("v_mov_b32 v12, s60")
        a("s_mov_b64 exec, -1")
        a("v_cmp_gt_u32 vcc, 32, v0")
        a("s_and_saveexec_b64 s[70:71], vcc")
        a("s_cbranch_execz k2_end")
        a("v_lshlrev_b32 v13, 3, v0")
        a("s_lshl_b32 s51, s2, 8")
        a(f"s_add_u32 s51, s51, {8<<20}")
        a(f"s_mov_b32 s38, {16<<20}")
        a("v_mov_b32 v9, 0")
        a("buffer_load_dwordx2 v[14:15], v13, s[36:39], s51 offen")
        a("s_waitcnt vmcnt(0)")
        for d in ("quad_perm:[1,0,3,2]", "quad_perm:[2,3,0,1]", "row_half_mirror", "row_mirror"):
            a("s_nop 1")
            a(f"v_max_u32 v14, v14, v14 {d}")
            a(f"v_max_u32 v15, v15, v15 {d}")
        a("s_mov_b64 exec, 0x10001")
        a("buffer_atomic_umax v14, v9, s[64:67], 0 offen offset:32")
        a("buffer_atomic_umax v15, v9, s[64:67], 0 offen offset:36")
        a("s_mov_b64 exec, 1")
        a("buffer_atomic_umax v10, v9, s[64:67], 0 offen offset:16")
        a("buffer_atomic_umax v11, v9, s[64:67], 0 offen offset:20")
        a("buffer_atomic_umax v12, v9, s[64:67], 0 offen offset:24")
    a.lab("k2_end")
    a("s_endpgm")
    return a.txt(), 64

def k3(opt):
    a = A()
    mul = opt.get("mul", 10)
    which = opt.get("which", 0)
    a("s_memrealtime s[60:61]")
    a("s_cmp_ge_u32 s2, 1")
    a("s_cbranch_scc1 k3_end")
    a("s_load_dwordx2 s[36:37], s[0:1], 64")
    a("s_load_dwordx2 s[64:65], s[0:1], 56")
    a(f"s_mov_b32 s38, {16<<20}")
    a("s_mov_b32 s39, 0x00020000")
    a("s_mov_b32 s66, 256")
    a("s_mov_b32 s67, 0x00020000")
    a("v_lshlrev_b32 v1, 4, v0")
    a(f"s_mov_b32 s51, {8<<20}")
    a("s_waitcnt lgkmcnt(0)")
    for i in range(16):
        a(f"buffer_load_dwordx4 v[{4+4*i}:{7+4*i}], v1, s[36:39], s51 offen")
        a("s_add_u32 s51, s51, 1024")
    a("s_waitcnt vmcnt(0)")
    for i in range(1, 32):
        a(f"v_max_u32 v4, v4, v{4+2*i}")
        a(f"v_max_u32 v5, v5, v{5+2*i}")
    for d in ("quad_perm:[1,0,3,2]", "quad_perm:[2,3,0,1]", "row_half_mirror", "row_mirror"):
        a("s_nop 1")
        a(f"v_max_u32 v4, v4, v4 {d}")
        a(f"v_max_u32 v5, v5, v5 {d}")
    a("s_nop 1")
    for r in range(4):
        a(f"v_readlane_b32 s{10+r}, v4, {16*r}")
        a(f"v_readlane_b32 s{14+r}, v5, {16*r}")
    for r in range(1, 4):
        a(f"s_max_u32 s10, s10, s{10+r}")
        a(f"s_max_u32 s14, s14, s{14+r}")
    a("s_not_b32 s10, s10")
    if which == 0:
        a("s_sub_u32 s11, s60, s10")
    else:
        a("s_sub_u32 s11, s14, s10")
    a("s_min_u32 s11, s11, 5000")
    a(f"s_mul_i32 s11, s11, {mul}")
    a("v_mov_b32 v4, s11")
    a("v_mov_b32 v5, 0")
    a("s_mov_b64 exec, 1")
    a("buffer_store_dword v4, v5, s[64:67], 0 offen")
    a("s_mov_b32 s12, 0")
    a.lab("k3_spin")
    a("s_memrealtime s[62:63]")
    a("s_waitcnt lgkmcnt(0)")
    a("s_sub_u32 s13, s62, s60")
    a("s_cmp_ge_u32 s13, s11")
    a("s_cbranch_scc1 k3_end")
    a("s_add_u32 s12, s12, 1")
    a("s_cmp_lt_u32 s12, 100000")
    a("s_cbranch_scc1 k3_spin")
    a.lab("k3_end")
    a("s_endpgm")
    return a.txt(), 72

def build(opt):
    n1 = NAME + "_kernel"
    n2 = "combine_kernel"
    t1, nv1 = k1(opt)
    t2, nv2 = k2(opt)
    s = "\n".join(HDR) + "\n"
    s += f"; @launch kernel={n1} grid=(256,1,1) block=(512,1,1) lds={LDS1}\n"
    s += f"; @launch kernel={n2} grid=(64,1,1) block=(256,1,1) lds=0\n"
    ks = [(n1, t1), (n2, t2)]
    if opt.get("dbgts", 0) == 2:
        t3, nv3 = k3(opt)
        ks.append(("meas_kernel", t3))
        s += f"; @launch kernel=meas_kernel grid=(1,1,1) block=(64,1,1) lds=0\n"
    s += '.amdgcn_target "amdgcn-amd-amdhsa--gfx950"\n.text\n'
    for n, t in ks:
        s += f".globl {n}\n.p2align 8\n.type {n},@function\n{n}:\n" + t
    s += '.section .rodata,"a"\n.p2align 6\n' + desc(n1, nv1)
    s += '.p2align 6\n' + desc(n2, nv2)
    if opt.get("dbgts", 0) == 2:
        s += '.p2align 6\n' + desc("meas_kernel", nv3)
    return s

if __name__ == "__main__":
    opt = {}
    out = f"cdna_kernels/{NAME}.s"
    for x in sys.argv[1:]:
        k, v = x.split("=")
        if k == "out":
            out = v
        else:
            opt[k] = int(v)
    open(out, "w").write(build(opt))
```

```python
import sys
from gen1 import A, vr, desc, HDR, NAME, f32, LOG2E, CSC

OBS = 4352
ML_OFF = 256 * OBS
WS_SIZE = ML_OFF + 64 * 256
WST = 4224
LDS_ML = 8 * WST
LDS_SZ = LDS_ML + 512

def kern(opt):
    a = A()
    prof = opt.get("prof", 0)
    mp = opt.get("map", 1)
    pmap = opt.get("pmap", 0)
    sw = opt.get("sw", 7)
    apos = opt.get("apos", 0)
    lprio = opt.get("lprio", 1)
    pw = opt.get("pw", 12)
    osc = " sc1" if opt.get("osc", 0) else ""
    preb = opt.get("preb", 1)
    LIM = opt.get("lim", 200000)
    Q, K, V = 8, 16, 80
    D0, X, PK, PK1 = 144, 148, 156, 160
    T0, T1, T2, T3 = 164, 165, 166, 167
    VT0, ACC, VT1 = K, K + 32, V
    def ts(i):
        if prof:
            a(f"s_memrealtime s[{72+2*i}:{73+2*i}]")
    def D(u):
        return D0 if u == 0 else K + 8 * (u - 1)
    ts(0)
    a("s_cmp_ge_u32 s2, 256")
    a("s_cbranch_scc1 k_end")
    a("s_load_dwordx2 s[28:29], s[0:1], 8")
    a("s_load_dwordx2 s[24:25], s[0:1], 0")
    a("s_load_dwordx2 s[32:33], s[0:1], 16")
    a("s_load_dwordx2 s[16:17], s[0:1], 64")
    a("s_load_dwordx2 s[20:21], s[0:1], 56")
    a("v_lshrrev_b32 v1, 6, v0")
    a("v_and_b32 v2, 63, v0")
    a("v_readfirstlane_b32 s3, v1")
    a("v_bfe_u32 v4, v0, 4, 2")
    a("v_bfe_u32 v5, v0, 1, 1")
    a("v_lshlrev_b32 v5, 10, v5")
    a("v_bfe_u32 v6, v0, 2, 2")
    a("v_lshl_or_b32 v5, v6, 8, v5")
    a("v_lshl_or_b32 v5, v4, 5, v5")
    a("v_and_b32 v6, 1, v0")
    a("v_lshl_or_b32 v5, v6, 4, v5")
    a("v_and_b32 v3, 7, v0")
    a("v_lshlrev_b32 v7, 8, v3")
    a("v_lshl_or_b32 v7, v4, 5, v7")
    a("v_bfe_u32 v6, v0, 3, 1")
    a("v_lshl_or_b32 v7, v6, 4, v7")
    a("v_lshlrev_b32 v6, 4, v2")
    a("s_mov_b32 s26, 16384")
    a("s_mov_b32 s27, 0x00020000")
    a("s_mov_b32 s30, 0x02000000")
    a("s_mov_b32 s31, 0x00020000")
    a("s_mov_b32 s34, 0x02000000")
    a("s_mov_b32 s35, 0x00020000")
    if pmap == 0:
        a("s_lshr_b32 s44, s2, 5")
        a("s_and_b32 s45, s2, 31")
        IDX = "s2"
    else:
        a("s_and_b32 s44, s2, 7")
        a("s_lshr_b32 s45, s2, 3")
        a("s_lshl_b32 s4, s44, 5")
        a("s_add_u32 s4, s4, s45")
        IDX = "s4"
    a(f"s_lshl_b32 s40, {IDX}, 17")
    a(f"s_lshl_b32 s41, s3, {12 if mp == 1 else 13}")
    a("s_add_u32 s40, s40, s41")
    offs = [32768, 65536, 98304] if mp == 1 else [4096, 65536, 69632]
    for t in range(3):
        a(f"s_add_u32 s{41+t}, s40, {offs[t]}")
    a("s_lshl_b32 s49, s44, 11")
    a(f"s_cmp_lg_u32 s3, {sw}")
    a("s_cbranch_scc0 k_sent")
    a("s_waitcnt lgkmcnt(0)")
    a.lab("k_load")
    for c in range(2):
        a(f"buffer_load_dwordx4 {vr(Q+4*c)}, v7, s[24:27], s49 offen offset:{128*c}")
    for u in range(8):
        for c in range(2):
            a(f"buffer_load_dwordx4 {vr(K+8*u+4*c)}, v5, s[28:31], s{40+(u>>1)} offen offset:{2048*(u&1)+128*c} nt")
    for j in range(16):
        a(f"buffer_load_dwordx4 {vr(V+4*j)}, v6, s[32:35], s{40+(j>>2)} offen offset:{1024*(j&3)} nt")
    ts(1)
    a(f"s_mov_b32 s46, {f32(CSC)}")
    a("s_mov_b32 s47, 0x05040100")
    a("s_mov_b32 s48, 0x07060302")
    a("s_cmp_ge_u32 s3, 4")
    a("s_cselect_b32 s50, 1, 0")
    if lprio:
        a("s_cbranch_scc0 k_np")
        a(f"s_setprio {lprio}")
        a.lab("k_np")
    a(f"s_mul_i32 s51, s3, {WST}")
    a("v_lshlrev_b32 v1, 3, v1")
    a("v_lshl_add_u32 v1, v3, 6, v1")
    a("v_lshlrev_b32 v4, 7, v4")
    a("v_mul_u32_u24 v3, 528, v3")
    a("v_add3_u32 v4, v4, v3, s51")
    def xadd(u):
        uu, G = u & 3, u >> 2
        for rr in range(2):
            if G == 0:
                a(f"v_add_f32 v{X+2*uu+rr}, v{D(u)+2*rr+1}, v{D(u)+2*rr} row_ror:8 row_mask:0xf bank_mask:0x3")
            else:
                a(f"v_add_f32 v{X+2*uu+rr}, v{D(u)+2*rr}, v{D(u)+2*rr+1} row_ror:8 row_mask:0xf bank_mask:0xc")
    for u in range(8):
        a(f"s_waitcnt vmcnt({30-2*u})")
        a(f"v_mfma_f32_16x16x32_bf16 {vr(D(u))}, {vr(K+8*u)}, {vr(Q)}, 0")
        a(f"v_mfma_f32_16x16x32_bf16 {vr(D(u))}, {vr(K+8*u+4)}, {vr(Q+4)}, {vr(D(u))}")
        if u >= 4:
            xadd(u - 4)
    xadd(4)
    xadd(5)
    xadd(6)
    xadd(7)
    a(f"v_max3_f32 v{T0}, v{X}, v{X+1}, v{X+2}")
    a(f"v_max3_f32 v{T1}, v{X+3}, v{X+4}, v{X+5}")
    a(f"v_max3_f32 v{T0}, v{T0}, v{X+6}, v{X+7}")
    a(f"v_max_f32 v{T0}, v{T0}, v{T1}")
    a("s_nop 1")
    a(f"v_max_f32 v{T0}, v{T0}, v{T0} row_ror:8")
    for s_ in ("16", "32"):
        a(f"v_mov_b32 v{T1}, v{T0}")
        a("s_nop 1")
        a(f"v_permlane{s_}_swap_b32 v{T0}, v{T1}")
        a(f"v_max_f32 v{T0}, v{T0}, v{T1}")
    a(f"v_mul_f32 v{T2}, s46, v{T0}")
    for i in range(8):
        a(f"v_fma_f32 v{X+i}, v{X+i}, s46, -v{T2}")
    for i in range(8):
        a(f"v_exp_f32 v{X+i}, v{X+i}")
    a("s_nop 0")
    for q in range(4):
        a(f"v_cvt_pk_bf16_f32 v{PK+q}, v{X+2*q}, v{X+2*q+1}")
    a(f"v_add_f32 v{T0}, v{X}, v{X+1}")
    a(f"v_add_f32 v{T1}, v{X+2}, v{X+3}")
    a(f"v_add_f32 v{T0}, v{T0}, v{X+4}")
    a(f"v_add_f32 v{T1}, v{T1}, v{X+5}")
    a(f"v_add_f32 v{T0}, v{T0}, v{X+6}")
    a(f"v_add_f32 v{T1}, v{T1}, v{X+7}")
    a(f"v_add_f32 v{T3}, v{T0}, v{T1}")
    for q in range(4):
        a(f"v_mov_b32 v{PK1+q}, v{PK+q} row_ror:8")
        if q == 1:
            a(f"v_add_f32 v{T3}, v{T3}, v{T3} row_ror:8")
    for s_ in ("16", "32"):
        a(f"v_mov_b32 v{T1}, v{T3}")
        a("s_nop 1")
        a(f"v_permlane{s_}_swap_b32 v{T3}, v{T1}")
        a(f"v_add_f32 v{T3}, v{T3}, v{T1}")
    a("s_mov_b64 exec, 0xff")
    a(f"ds_write_b64 v1, v[{T2}:{T3}] offset:{LDS_ML}")
    a("s_mov_b64 exec, -1")
    ts(2)
    def barA():
        a("s_cmp_eq_u32 s50, 0")
        a("s_cbranch_scc1 k_noA")
        a("s_waitcnt lgkmcnt(0)")
        a("s_barrier")
        a.lab("k_noA")
    if apos == 0: barA()
    for G in range(2):
        VT = VT0 if G == 0 else VT1
        W = V + 32*G
        P = PK if G == 0 else PK1
        for aa in range(4):
            a(f"s_waitcnt vmcnt({14 - 8*G - 2*aa})")
            for i in range(8):
                q = i >> 1
                sel = "s47" if (i & 1) == 0 else "s48"
                a(f"v_perm_b32 v{VT+4*i+aa}, v{W+4*(2*aa+1)+q}, v{W+4*(2*aa)+q}, {sel}")
                if aa == 3 and i >= 2:
                    ii = i - 2
                    cc = "0" if G == 0 else vr(ACC+4*ii)
                    a(f"v_mfma_f32_16x16x32_bf16 {vr(ACC+4*ii)}, {vr(VT+4*ii)}, {vr(P)}, {cc}")
        a("s_nop 0")
        for ii in (6, 7):
            cc = "0" if G == 0 else vr(ACC+4*ii)
            a(f"v_mfma_f32_16x16x32_bf16 {vr(ACC+4*ii)}, {vr(VT+4*ii)}, {vr(P)}, {cc}")
        if G == 0 and apos == 1: barA()
    a("s_mov_b32 exec_lo, 0x00ff00ff")
    a("s_mov_b32 exec_hi, 0x00ff00ff")
    for i in range(8):
        if i == 6:
            a("s_nop 0")
        a(f"ds_write_b128 v4, {vr(ACC+4*i)} offset:{16*i}")
    a("s_mov_b64 exec, -1")
    a("s_cmp_eq_u32 s50, 0")
    a("s_cbranch_scc1 k_early")
    a("s_waitcnt lgkmcnt(0)")
    a("s_barrier")
    if prof:
        ts(3)
        for i in (4, 5, 6): ts(i)
        a("s_mov_b32 s64, 0")
        a("s_branch k_prof")
    a.lab("k_end")
    a("s_endpgm")
    a.lab("k_sent")
    a("s_setprio 3")
    a(f"s_mov_b32 s18, {WS_SIZE if not prof else (16<<20)}")
    a("s_mov_b32 s19, 0x00020000")
    a("s_mov_b32 s22, 256")
    a("s_mov_b32 s23, 0x00020000")
    for i in range(4):
        a(f"v_mov_b32 v{D0+i}, -1")
    a(f"s_mul_i32 s51, {IDX}, {OBS}")
    a("s_and_b32 s52, s45, 7")
    a("s_lshl_b32 s52, s52, 5")
    a("s_lshr_b32 s53, s45, 3")
    a("s_lshl_b32 s53, s53, 3")
    a("s_add_u32 s52, s52, s53")
    a("s_add_u32 s52, s52, s49")
    a(f"s_add_u32 s52, s52, {ML_OFF}")
    a(f"v_lshlrev_b32 v{T0}, 8, v2")
    a(f"v_mov_b32 v{T1}, 1")
    a(f"v_mov_b32 v{T2}, 0")
    a("s_lshl_b32 s53, s44, 5")
    a("s_waitcnt lgkmcnt(0)")
    for i in range(4):
        a(f"buffer_store_dwordx4 {vr(D0)}, v6, s[16:19], s51 offen offset:{1024*i} sc1")
    a("s_mov_b64 exec, 0xff")
    a(f"buffer_store_dwordx2 v[{D0}:{D0+1}], v{T0}, s[16:19], s52 offen sc1")
    a("s_mov_b64 exec, 1")
    a("s_waitcnt vmcnt(0)")
    a(f"buffer_atomic_add v{T1}, v{T2}, s[20:23], s53 offen sc1")
    a("s_mov_b64 exec, -1")
    a("s_setprio 0")
    a("s_branch k_load")
    O, ML, F, AC, TT = 16, 32, 40, 48, 52
    VTR, TS, VO, VML, VOUT, C0, C1, C2 = 56, 60, 61, 62, 63, 64, 65, 66
    T, PT, RA, MLP, VRD, VMP = 96, 112, 128, 132, 134, 135
    a.lab("k_early")
    ts(3)
    a(f"s_mov_b32 s18, {WS_SIZE if not prof else (16<<20)}")
    a("s_mov_b32 s19, 0x00020000")
    a("s_lshr_b32 s53, s45, 3")
    a("s_cmp_eq_u32 s53, s3")
    a("s_cselect_b32 s55, 1, 0")
    a("s_mov_b32 s64, 0")
    a("s_cbranch_scc0 k_noprep")
    a("s_load_dwordx2 s[36:37], s[0:1], 24")
    a("s_load_dwordx2 s[8:9], s[0:1], 32")
    a("s_load_dwordx2 s[6:7], s[0:1], 40")
    a("s_load_dwordx2 s[12:13], s[0:1], 48")
    a("s_mov_b32 s22, 256")
    a("s_mov_b32 s23, 0x00020000")
    a("s_mov_b32 s38, 2048")
    a("s_mov_b32 s39, 0x00020000")
    a("s_mov_b32 s10, 2048")
    a("s_mov_b32 s11, 0x00020000")
    a("s_mov_b32 s14, 16384")
    a("s_mov_b32 s15, 0x00020000")
    a("s_lshr_b32 s56, s45, 2")
    a("s_lshl_b32 s56, s56, 8")
    a("s_add_u32 s56, s56, s49")
    a("s_lshl_b32 s57, s44, 8")
    a("s_and_b32 s58, s45, 3")
    a("s_lshl_b32 s58, s58, 6")
    a("s_add_u32 s59, s58, s57")
    a("s_add_u32 s58, s58, s56")
    a("s_lshl_b32 s54, s44, 5")
    a(f"v_lshlrev_b32 v{C0}, 2, v2")
    a(f"v_and_b32 v{VOUT}, 7, v2")
    a(f"v_lshlrev_b32 v{VO}, 4, v{VOUT}")
    a(f"v_lshlrev_b32 v{VOUT}, 1, v{VOUT}")
    a(f"v_mov_b32 v{C2}, 0")
    for i in range(4):
        a(f"v_mov_b32 v{VTR+i}, 0")
    a("s_waitcnt lgkmcnt(0)")
    a("s_load_dword s6, s[6:7], 0")
    a(f"buffer_load_dword v{AC}, v{C2}, s[20:23], s54 offen sc1")
    a(f"buffer_load_dword v{AC+1}, v{C0}, s[24:27], s56 offen")
    a(f"buffer_load_dword v{AC+2}, v{C0}, s[36:39], s57 offen")
    a("s_mov_b64 exec, 0xff")
    for i in range(4):
        a(f"buffer_load_short_d16_hi v{VTR+i}, v{VOUT}, s[8:11], s59 offen offset:{16*i}")
    a("s_mov_b64 exec, -1")
    a(f"v_lshrrev_b32 v{C1}, 3, v2")
    a(f"v_lshlrev_b32 v{VML}, 5, v{C1}")
    a(f"v_mul_u32_u24 v{C1}, {OBS}, v{C1}")
    a(f"v_add_u32 v{VO}, v{VO}, v{C1}")
    a(f"v_mov_b32 v{C0}, 48")
    a(f"v_and_or_b32 v{VOUT}, v2, v{C0}, v{VOUT}")
    a(f"s_mul_i32 s66, s44, {32*OBS}")
    a("s_lshl_b32 s67, s45, 7")
    a("s_add_u32 s66, s66, s67")
    for q in range(1, 4):
        a(f"s_add_u32 s{66+q}, s66, {8*OBS*q}")
    a(f"s_add_u32 s56, s56, {ML_OFF}")
    for i in range(24):
        a(f"v_mov_b32 v{O+i}, -1")
    a(f"s_mov_b32 s7, {f32(-1e9*LOG2E)}")
    a("s_waitcnt lgkmcnt(0)")
    a("s_lshl_b32 s5, s6, 16")
    a("s_and_b32 s6, s6, 0xffff0000")
    a("s_cmp_ge_u32 s44, 4")
    a("s_cselect_b32 s6, s6, s5")
    a(f"v_mov_b32 v{TS}, s6")
    a(f"v_sub_f32 v{TS}, 1.0, v{TS}")
    a(f"v_mul_f32 v{TS}, s7, v{TS}")
    a("s_mov_b32 s60, 0")
    a("s_mov_b32 s61, 0")
    a("s_mov_b32 s63, 0")
    a("s_mov_b32 s65, 0")
    a("s_waitcnt vmcnt(0)")
    a(f"v_readfirstlane_b32 s62, v{AC}")
    a(f"v_lshlrev_b32 v{C0}, 16, v{AC+1}")
    a(f"v_lshlrev_b32 v{C1}, 16, v{AC+2}")
    a(f"v_and_b32 v{AC+1}, 0xffff0000, v{AC+1}")
    a(f"v_and_b32 v{AC+2}, 0xffff0000, v{AC+2}")
    a(f"v_mul_f32 v{C0}, v{C0}, v{C1}")
    a(f"v_fma_f32 v{C0}, v{AC+1}, v{AC+2}, v{C0}")
    for d in ("quad_perm:[1,0,3,2]", "quad_perm:[2,3,0,1]", "row_half_mirror", "row_mirror"):
        a("s_nop 1")
        a(f"v_add_f32 v{C0}, v{C0}, v{C0} {d}")
    for s_ in ("16", "32"):
        a(f"v_mov_b32 v{C1}, v{C0}")
        a("s_nop 1")
        a(f"v_permlane{s_}_swap_b32 v{C0}, v{C1}")
        a(f"v_add_f32 v{C0}, v{C0}, v{C1}")
    a(f"v_fma_f32 v{TS}, v{C0}, s46, v{TS}")
    a.lab("k_noprep")
    a(f"v_lshrrev_b32 v{VMP}, 5, v2")
    a("s_lshl_b32 s5, s3, 1")
    a(f"v_add_u32 v{VRD}, s5, v{VMP}")
    a(f"v_lshlrev_b32 v{MLP}, 6, v{VRD}")
    a(f"v_mul_u32_u24 v{VRD}, 528, v{VRD}")
    a(f"v_and_b32 v{MLP+1}, 31, v2")
    a(f"v_lshl_add_u32 v{VRD}, v{MLP+1}, 4, v{VRD}")
    a(f"v_lshlrev_b32 v{VMP}, 8, v{VMP}")
    a(f"s_mul_i32 s51, {IDX}, {OBS}")
    a("s_lshl_b32 s5, s3, 10")
    a("s_add_u32 s51, s51, s5")
    a("s_and_b32 s52, s45, 7")
    a("s_lshl_b32 s52, s52, 5")
    a("s_lshl_b32 s53, s53, 3")
    a("s_add_u32 s52, s52, s53")
    a("s_add_u32 s52, s52, s49")
    a("s_lshl_b32 s5, s3, 9")
    a("s_add_u32 s52, s52, s5")
    a(f"s_add_u32 s52, s52, {ML_OFF}")
    for i in range(4):
        a(f"v_mov_b32 v{RA+i}, 0")
    a("s_mov_b64 s[70:71], 0")
    a("s_waitcnt lgkmcnt(0)")
    a("s_barrier")
    for i in range(4):
        a(f"ds_read_b128 {vr(T+4*i)}, v{MLP} offset:{LDS_ML+16*i}")
    a("s_waitcnt lgkmcnt(0)")
    ts(4)
    a(f"v_max3_f32 v{MLP}, v{T}, v{T+2}, v{T+4}")
    a(f"v_max3_f32 v{MLP+1}, v{T+6}, v{T+8}, v{T+10}")
    a(f"v_max3_f32 v{MLP}, v{MLP}, v{T+12}, v{T+14}")
    a(f"v_max_f32 v{MLP}, v{MLP}, v{MLP+1}")
    for j in range(8):
        a(f"v_sub_f32 v{T+2*j}, v{T+2*j}, v{MLP}")
    for j in range(8):
        a(f"v_exp_f32 v{T+2*j}, v{T+2*j}")
    a("s_nop 0")
    a(f"v_mul_f32 v{MLP+1}, v{T}, v{T+1}")
    for j in range(1, 8):
        a(f"v_fma_f32 v{MLP+1}, v{T+2*j}, v{T+2*j+1}, v{MLP+1}")
    a("s_mov_b32 exec_lo, 1")
    a("s_mov_b32 exec_hi, 1")
    a(f"buffer_store_dwordx2 v[{MLP}:{MLP+1}], v{VMP}, s[16:19], s52 offen sc1")
    a("s_mov_b64 exec, -1")
    if prof: a("s_waitcnt lgkmcnt(0)")
    a("s_branch k_red")
    a.lab("k_barb")
    a("s_barrier")
    a.lab("k_red")
    for j in range(4):
        a(f"ds_read_b128 {vr(PT+4*j)}, v{VRD} offset:{WST*j}")
    for j in range(4):
        a(f"s_waitcnt lgkmcnt({3-j})")
        for h in range(2):
            a(f"v_pk_fma_f32 v[{RA+2*h}:{RA+2*h+1}], v[{PT+4*j+2*h}:{PT+4*j+2*h+1}], v[{T+2*j}:{T+2*j+1}], v[{RA+2*h}:{RA+2*h+1}] op_sel_hi:[1,0,1]")
    a("s_mov_b64 exec, s[70:71]")
    a(f"buffer_store_dwordx4 {vr(RA)}, v6, s[16:19], s51 offen sc1")
    a("s_cbranch_execnz k_post")
    a("s_mov_b64 exec, -1")
    a("s_mov_b64 s[70:71], -1")
    for j in range(4):
        a(f"v_mov_b32 v{T+2*j}, v{T+8+2*j}")
    a(f"v_add_u32 v{VRD}, {4*WST}, v{VRD}")
    a("s_cmp_eq_u32 s55, 0")
    a("s_cbranch_scc1 k_barb")
    a("s_branch k_cons")
    a.lab("k_post")
    ts(5)
    a("s_cmp_eq_u32 s55, 0")
    a("s_cbranch_scc1 " + ("k_end" if not prof else "k_pend"))
    a("s_mov_b32 s60, 1")
    a("s_cmp_eq_u32 s62, 32")
    a("s_cbranch_scc0 k_cspin")
    a.lab("k_cons")
    a("s_cmp_lg_u32 s61, 0")
    a("s_cbranch_scc1 k_acc")
    a(f"v_max3_u32 v{C0}, v{ML}, v{ML+1}, v{ML+2}")
    a(f"v_max3_u32 v{C1}, v{ML+3}, v{ML+4}, v{ML+5}")
    a(f"v_max3_u32 v{C0}, v{C0}, v{ML+6}, v{ML+7}")
    a(f"v_max_u32 v{C0}, v{C0}, v{C1}")
    a(f"v_cmp_eq_u32 vcc, -1, v{C0}")
    a("s_cmp_eq_u64 vcc, 0")
    a("s_cselect_b32 s61, 1, 0")
    a("s_cmp_gt_u32 s60, s61")
    a("s_cbranch_scc1 k_retry")
    a.lab("k_fac")
    a(f"v_max3_f32 v{C0}, v{ML}, v{ML+2}, v{ML+4}")
    a(f"v_max3_f32 v{C0}, v{C0}, v{ML+6}, v{TS}")
    a("s_nop 1")
    a(f"v_max_f32 v{C0}, v{C0}, v{C0} row_ror:8")
    for s_ in ("16", "32"):
        a(f"v_mov_b32 v{C1}, v{C0}")
        a("s_nop 1")
        a(f"v_permlane{s_}_swap_b32 v{C0}, v{C1}")
        a(f"v_max_f32 v{C0}, v{C0}, v{C1}")
    for q in range(4):
        a(f"v_sub_f32 v{F+2*q}, v{ML+2*q}, v{C0}")
    a(f"v_sub_f32 v{C2}, v{TS}, v{C0}")
    for q in range(4):
        a(f"v_exp_f32 v{F+2*q}, v{F+2*q}")
    a(f"v_exp_f32 v{C2}, v{C2}")
    a(f"v_mul_f32 v{C0}, v{F}, v{ML+1}")
    for q in range(1, 4):
        a(f"v_fma_f32 v{C0}, v{F+2*q}, v{ML+2*q+1}, v{C0}")
    a("s_nop 1")
    a(f"v_add_f32 v{C0}, v{C0}, v{C0} row_ror:8")
    for s_ in ("16", "32"):
        a(f"v_mov_b32 v{C1}, v{C0}")
        a("s_nop 1")
        a(f"v_permlane{s_}_swap_b32 v{C0}, v{C1}")
        a(f"v_add_f32 v{C0}, v{C0}, v{C1}")
    a(f"v_add_f32 v{C0}, v{C0}, v{C2}")
    a(f"v_rcp_f32 v{C0}, v{C0}")
    a("s_nop 0")
    a(f"v_mul_f32 v{C2}, v{C2}, v{C0}")
    for q in range(4):
        a(f"v_mul_f32 v{F+2*q}, v{F+2*q}, v{C0}")
    for i in range(4):
        a(f"v_mul_f32 v{TT+i}, v{C2}, v{VTR+i}")
    a.lab("k_acc")
    for q in range(4):
        for h in range(2):
            src = TT if q == 0 else AC
            a(f"v_pk_fma_f32 v[{AC+2*h}:{AC+2*h+1}], v[{O+4*q+2*h}:{O+4*q+2*h+1}], v[{F+2*q}:{F+2*q+1}], v[{src+2*h}:{src+2*h+1}] op_sel_hi:[1,0,1]")
    a("s_nop 1")
    a(f"v_permlane32_swap_b32 v{AC}, v{AC+2}")
    a(f"v_permlane32_swap_b32 v{AC+1}, v{AC+3}")
    a(f"v_pk_add_f32 v[{AC}:{AC+1}], v[{AC}:{AC+1}], v[{AC+2}:{AC+3}]")
    a("s_nop 1")
    a(f"v_permlane16_swap_b32 v{AC}, v{AC+1}")
    a(f"v_add_f32 v{AC}, v{AC}, v{AC+1}")
    a("s_nop 1")
    a(f"v_add_f32 v{AC}, v{AC}, v{AC} row_ror:8")
    a(f"v_cmp_u_f32 vcc, v{AC}, v{AC}")
    a(f"v_cvt_pk_bf16_f32 v{AC}, v{AC}, v{AC}")
    a("s_cbranch_vccnz k_nan")
    a.lab("k_store")
    a("s_mov_b32 exec_lo, 0x00ff00ff")
    a("s_mov_b32 exec_hi, 0x00ff00ff")
    a(f"buffer_store_short v{AC}, v{VOUT}, s[12:15], s58 offen{osc}")
    if prof:
        a("s_branch k_pend")
    a("s_waitcnt vmcnt(1)")
    a("s_endpgm")
    a.lab("k_nan")
    a("s_cmp_lg_u32 s65, 0")
    a("s_cbranch_scc1 k_store")
    a.lab("k_retry")
    for q in range(4):
        a(f"v_max3_u32 v{C0}, v{O+4*q}, v{O+4*q+1}, v{O+4*q+2}")
        a(f"v_max_u32 v{C0}, v{C0}, v{O+4*q+3}")
        a(f"v_cmp_eq_u32 s[{90+2*q}:{91+2*q}], -1, v{C0}")
    a("s_cmp_eq_u32 s62, 32")
    a("s_cbranch_scc0 k_barb")
    if not preb:
        a("s_cmp_eq_u32 s60, 0")
        a("s_cbranch_scc1 k_barb")
    a("s_cmp_lg_u32 s61, 0")
    a("s_cbranch_scc1 k_noml")
    a(f"buffer_load_dwordx4 {vr(ML)}, v{VML}, s[16:19], s56 offen sc1")
    a(f"buffer_load_dwordx4 {vr(ML+4)}, v{VML}, s[16:19], s56 offen offset:16 sc1")
    a.lab("k_noml")
    for q in range(4):
        a(f"s_mov_b64 exec, s[{90+2*q}:{91+2*q}]")
        a(f"buffer_load_dwordx4 {vr(O+4*q)}, v{VO}, s[16:19], s{66+q} offen sc1")
    a("s_mov_b64 exec, -1")
    a("s_cmp_eq_u32 s60, 0")
    a("s_cbranch_scc1 k_barb")
    a("s_or_b64 s[90:91], s[90:91], s[92:93]")
    a("s_or_b64 s[94:95], s[94:95], s[96:97]")
    a("s_or_b64 s[90:91], s[90:91], s[94:95]")
    a("s_cselect_b32 s5, 0, s61")
    a("s_add_u32 s63, s63, s5")
    a("s_add_u32 s64, s64, 1")
    a(f"s_cmp_ge_u32 s64, {LIM}")
    a("s_cbranch_scc1 k_final")
    a(f"s_waitcnt vmcnt({pw})")
    a("s_cmp_lt_u32 s63, 2")
    a("s_cbranch_scc1 k_cons")
    a.lab("k_final")
    a("s_waitcnt vmcnt(0)")
    a("s_mov_b32 s65, 1")
    a("s_branch k_fac")
    a.lab("k_cspin")
    a(f"v_mov_b32 v{C1}, 0")
    a(f"buffer_load_dword v{C0}, v{C1}, s[20:23], s54 offen sc1")
    a("s_add_u32 s64, s64, 1")
    a(f"s_cmp_ge_u32 s64, {LIM}")
    a("s_cbranch_scc1 k_final")
    a("s_waitcnt vmcnt(0)")
    a(f"v_readfirstlane_b32 s62, v{C0}")
    a("s_cmp_eq_u32 s62, 32")
    a("s_cbranch_scc0 k_cspin")
    a("s_branch k_retry")
    if prof:
        a.lab("k_pend")
        ts(6)
        a.lab("k_prof")
        a(f"s_mov_b32 s18, {16<<20}")
        a("s_mov_b32 s19, 0x00020000")
        a("s_getreg_b32 s87, hwreg(HW_REG_XCC_ID)")
        a("s_mov_b32 s86, s64")
        a("s_waitcnt lgkmcnt(0)")
        a("s_mov_b64 exec, 1")
        for i in range(16):
            a(f"v_mov_b32 v{100+i}, s{72+i}")
        a("s_lshl_b32 s51, s2, 3")
        a("s_add_u32 s51, s51, s3")
        a("s_lshl_b32 s51, s51, 6")
        a(f"s_add_u32 s51, s51, {8<<20}")
        a("v_mov_b32 v99, 0")
        for i in range(4):
            a(f"buffer_store_dwordx4 v[{100+4*i}:{103+4*i}], v99, s[16:19], s51 offen offset:{16*i}")
        a("s_waitcnt vmcnt(0)")
        a("s_endpgm")
    return a.txt(), 168

def build(opt):
    n1 = NAME + "_kernel"
    t1, nv1 = kern(opt)
    s = "\n".join(HDR) + "\n"
    s += f"; @launch grid=(256,1,1) block=(512,1,1) lds={LDS_SZ}\n"
    s += '.amdgcn_target "amdgcn-amd-amdhsa--gfx950"\n.text\n'
    s += f".globl {n1}\n.p2align 8\n.type {n1},@function\n{n1}:\n" + t1
    s += '.section .rodata,"a"\n.p2align 6\n' + desc(n1, nv1, 100)
    return s

if __name__ == "__main__":
    opt = {}
    out = f"cdna_kernels/{NAME}.s"
    for x in sys.argv[1:]:
        k, v = x.split("=")
        if k == "out":
            out = v
        else:
            opt[k] = int(v)
    open(out, "w").write(build(opt))
```

```python
import sys
from gen1 import A, vr, desc, HDR, NAME, f32, LOG2E, CSC

OBS = 4352
ML_OFF = 256 * OBS
WS_SIZE = ML_OFF + 64 * 256
WST = 4224
LDS_ML = 8 * WST
LDS_SZ = LDS_ML + 512

def kern(opt):
    a = A()
    prof = opt.get("prof", 0)
    mp = opt.get("map", 1)
    pmap = opt.get("pmap", 0)
    sw = opt.get("sw", 3)
    cw = opt.get("cw", 0)
    sbar = opt.get("sbar", 1)
    nopoll = opt.get("nopoll", 0)
    nosent = opt.get("nosent", 0)
    mlgate = opt.get("mlgate", 0)
    apos = opt.get("apos", 0)
    lprio = opt.get("lprio", 1)
    pw = opt.get("pw", 12)
    osc = " sc1" if opt.get("osc", 0) else ""
    preb = opt.get("preb", 1)
    LIM = opt.get("lim", 200000)
    Q, K, V = 8, 16, 80
    D0, X, PK, PK1 = 144, 148, 156, 160
    T0, T1, T2, T3 = 164, 165, 166, 167
    VT0, ACC, VT1 = K, K + 32, V
    def ts(i):
        if prof:
            a(f"s_memrealtime s[{72+2*i}:{73+2*i}]")
    def D(u):
        return D0 if u == 0 else K + 8 * (u - 1)
    ts(0)
    a("s_cmp_ge_u32 s2, 256")
    a("s_cbranch_scc1 k_end")
    a("s_load_dwordx2 s[28:29], s[0:1], 8")
    a("s_load_dwordx2 s[24:25], s[0:1], 0")
    a("s_load_dwordx2 s[32:33], s[0:1], 16")
    a("s_load_dwordx2 s[16:17], s[0:1], 64")
    a("s_load_dwordx2 s[20:21], s[0:1], 56")
    a("v_lshrrev_b32 v1, 6, v0")
    a("v_and_b32 v2, 63, v0")
    a("v_readfirstlane_b32 s3, v1")
    a("v_bfe_u32 v4, v0, 4, 2")
    a("v_bfe_u32 v5, v0, 1, 1")
    a("v_lshlrev_b32 v5, 10, v5")
    a("v_bfe_u32 v6, v0, 2, 2")
    a("v_lshl_or_b32 v5, v6, 8, v5")
    a("v_lshl_or_b32 v5, v4, 5, v5")
    a("v_and_b32 v6, 1, v0")
    a("v_lshl_or_b32 v5, v6, 4, v5")
    a("v_and_b32 v3, 7, v0")
    a("v_lshlrev_b32 v7, 8, v3")
    a("v_lshl_or_b32 v7, v4, 5, v7")
    a("v_bfe_u32 v6, v0, 3, 1")
    a("v_lshl_or_b32 v7, v6, 4, v7")
    a("v_lshlrev_b32 v6, 4, v2")
    a("s_mov_b32 s26, 16384")
    a("s_mov_b32 s27, 0x00020000")
    a("s_mov_b32 s30, 0x02000000")
    a("s_mov_b32 s31, 0x00020000")
    a("s_mov_b32 s34, 0x02000000")
    a("s_mov_b32 s35, 0x00020000")
    if pmap == 0:
        a("s_lshr_b32 s44, s2, 5")
        a("s_and_b32 s45, s2, 31")
        IDX = "s2"
    else:
        a("s_and_b32 s44, s2, 7")
        a("s_lshr_b32 s45, s2, 3")
        a("s_lshl_b32 s4, s44, 5")
        a("s_add_u32 s4, s4, s45")
        IDX = "s4"
    a(f"s_lshl_b32 s40, {IDX}, 17")
    a(f"s_lshl_b32 s41, s3, {12 if mp == 1 else 13}")
    a("s_add_u32 s40, s40, s41")
    offs = [32768, 65536, 98304] if mp == 1 else [4096, 65536, 69632]
    a("s_lshl_b32 s49, s44, 11")
    a(f"s_cmp_lg_u32 s3, {sw}")
    a("s_cbranch_scc0 k_sent")
    a("s_waitcnt lgkmcnt(0)")
    a.lab("k_load")
    if sbar: a("s_barrier")
    for c in range(2):
        a(f"buffer_load_dwordx4 {vr(Q+4*c)}, v7, s[24:27], s49 offen offset:{128*c}")
    for u in range(8):
        for c in range(2):
            a(f"buffer_load_dwordx4 {vr(K+8*u+4*c)}, v5, s[28:31], s{40 if u < 2 else 41} offen offset:{2048*(u&1)+128*c} nt")
        if u & 1:
            a(f"s_add_u32 s41, s40, {offs[u>>1]}" if u < 7 else f"s_mov_b32 s46, {f32(CSC)}")
    for j in range(16):
        a(f"buffer_load_dwordx4 {vr(V+4*j)}, v6, s[32:35], s{40 if j < 4 else 41} offen offset:{1024*(j&3)} nt")
        if (j & 3) == 3 and j < 15:
            a(f"s_add_u32 s41, s40, {offs[j>>2]}")
    ts(1)
    a("s_mov_b32 s47, 0x05040100")
    a("s_mov_b32 s48, 0x07060302")
    a("s_cmp_ge_u32 s3, 4")
    a("s_cselect_b32 s50, 1, 0")
    if lprio:
        a("s_cbranch_scc0 k_np")
        a(f"s_setprio {lprio}")
        a.lab("k_np")
    a(f"s_mul_i32 s51, s3, {WST}")
    a("v_lshlrev_b32 v1, 3, v1")
    a("v_lshl_add_u32 v1, v3, 6, v1")
    a("v_lshlrev_b32 v4, 7, v4")
    a("v_mul_u32_u24 v3, 528, v3")
    a("v_add3_u32 v4, v4, v3, s51")
    def xadd(u):
        uu, G = u & 3, u >> 2
        for rr in range(2):
            if G == 0:
                a(f"v_add_f32 v{X+2*uu+rr}, v{D(u)+2*rr+1}, v{D(u)+2*rr} row_ror:8 row_mask:0xf bank_mask:0x3")
            else:
                a(f"v_add_f32 v{X+2*uu+rr}, v{D(u)+2*rr}, v{D(u)+2*rr+1} row_ror:8 row_mask:0xf bank_mask:0xc")
    for u in range(8):
        a(f"s_waitcnt vmcnt({30-2*u})")
        a(f"v_mfma_f32_16x16x32_bf16 {vr(D(u))}, {vr(K+8*u)}, {vr(Q)}, 0")
        a(f"v_mfma_f32_16x16x32_bf16 {vr(D(u))}, {vr(K+8*u+4)}, {vr(Q+4)}, {vr(D(u))}")
        if u >= 4:
            xadd(u - 4)
    xadd(4)
    xadd(5)
    xadd(6)
    xadd(7)
    a(f"v_max3_f32 v{T0}, v{X}, v{X+1}, v{X+2}")
    a(f"v_max3_f32 v{T1}, v{X+3}, v{X+4}, v{X+5}")
    a(f"v_max3_f32 v{T0}, v{T0}, v{X+6}, v{X+7}")
    a(f"v_max_f32 v{T0}, v{T0}, v{T1}")
    a("s_nop 1")
    a(f"v_max_f32 v{T0}, v{T0}, v{T0} row_ror:8")
    for s_ in ("16", "32"):
        a(f"v_mov_b32 v{T1}, v{T0}")
        a("s_nop 1")
        a(f"v_permlane{s_}_swap_b32 v{T0}, v{T1}")
        a(f"v_max_f32 v{T0}, v{T0}, v{T1}")
    a(f"v_mul_f32 v{T2}, s46, v{T0}")
    for i in range(8):
        a(f"v_fma_f32 v{X+i}, v{X+i}, s46, -v{T2}")
    for i in range(8):
        a(f"v_exp_f32 v{X+i}, v{X+i}")
    a("s_nop 0")
    for q in range(4):
        a(f"v_cvt_pk_bf16_f32 v{PK+q}, v{X+2*q}, v{X+2*q+1}")
    a(f"v_add_f32 v{T0}, v{X}, v{X+1}")
    a(f"v_add_f32 v{T1}, v{X+2}, v{X+3}")
    a(f"v_add_f32 v{T0}, v{T0}, v{X+4}")
    a(f"v_add_f32 v{T1}, v{T1}, v{X+5}")
    a(f"v_add_f32 v{T0}, v{T0}, v{X+6}")
    a(f"v_add_f32 v{T1}, v{T1}, v{X+7}")
    a(f"v_add_f32 v{T3}, v{T0}, v{T1}")
    for q in range(4):
        a(f"v_mov_b32 v{PK1+q}, v{PK+q} row_ror:8")
        if q == 1:
            a(f"v_add_f32 v{T3}, v{T3}, v{T3} row_ror:8")
    for s_ in ("16", "32"):
        a(f"v_mov_b32 v{T1}, v{T3}")
        a("s_nop 1")
        a(f"v_permlane{s_}_swap_b32 v{T3}, v{T1}")
        a(f"v_add_f32 v{T3}, v{T3}, v{T1}")
    a("s_mov_b64 exec, 0xff")
    a(f"ds_write_b64 v1, v[{T2}:{T3}] offset:{LDS_ML}")
    a("s_mov_b64 exec, -1")
    ts(2)
    def barA():
        a("s_cmp_eq_u32 s50, 0")
        a("s_cbranch_scc1 k_noA")
        a("s_waitcnt lgkmcnt(0)")
        a("s_barrier")
        a.lab("k_noA")
    if apos == 0: barA()
    for G in range(2):
        VT = VT0 if G == 0 else VT1
        W = V + 32*G
        P = PK if G == 0 else PK1
        for aa in range(4):
            a(f"s_waitcnt vmcnt({14 - 8*G - 2*aa})")
            for i in range(8):
                q = i >> 1
                sel = "s47" if (i & 1) == 0 else "s48"
                a(f"v_perm_b32 v{VT+4*i+aa}, v{W+4*(2*aa+1)+q}, v{W+4*(2*aa)+q}, {sel}")
                if aa == 3 and i >= 2:
                    ii = i - 2
                    cc = "0" if G == 0 else vr(ACC+4*ii)
                    a(f"v_mfma_f32_16x16x32_bf16 {vr(ACC+4*ii)}, {vr(VT+4*ii)}, {vr(P)}, {cc}")
        a("s_nop 0")
        for ii in (6, 7):
            cc = "0" if G == 0 else vr(ACC+4*ii)
            a(f"v_mfma_f32_16x16x32_bf16 {vr(ACC+4*ii)}, {vr(VT+4*ii)}, {vr(P)}, {cc}")
        if G == 0 and apos == 1: barA()
    a("s_mov_b32 exec_lo, 0x00ff00ff")
    a("s_mov_b32 exec_hi, 0x00ff00ff")
    for i in range(8):
        if i == 6:
            a("s_nop 0")
        a(f"ds_write_b128 v4, {vr(ACC+4*i)} offset:{16*i}")
    a("s_mov_b64 exec, -1")
    ts(3)
    a("s_cmp_eq_u32 s50, 0")
    a("s_cbranch_scc1 k_early")
    a("s_waitcnt lgkmcnt(0)")
    a("s_barrier")
    if prof:
        for i in (4, 5, 6): ts(i)
        a("s_mov_b32 s64, 0")
        a("s_branch k_prof")
    a.lab("k_end")
    a("s_endpgm")
    a.lab("k_sent")
    a(f"s_mov_b32 s18, {WS_SIZE if not prof else (16<<20)}")
    a("s_mov_b32 s19, 0x00020000")
    for i in range(4):
        a(f"v_mov_b32 v{D0+i}, -1")
    a(f"s_mul_i32 s51, {IDX}, {OBS}")
    a("s_and_b32 s52, s45, 7")
    a("s_lshl_b32 s52, s52, 5")
    a("s_lshr_b32 s53, s45, 3")
    a("s_lshl_b32 s53, s53, 3")
    a("s_add_u32 s52, s52, s53")
    a("s_add_u32 s52, s52, s49")
    a(f"s_add_u32 s52, s52, {ML_OFF}")
    a(f"v_lshlrev_b32 v{T0}, 8, v2")
    a("s_waitcnt lgkmcnt(0)")
    for i in range(4 if not nosent else 0):
        a(f"buffer_store_dwordx4 {vr(D0)}, v6, s[16:19], s51 offen offset:{1024*i} sc1")
    a("s_mov_b64 exec, 0xff")
    a(f"buffer_store_dwordx2 v[{D0}:{D0+1}], v{T0}, s[16:19], s52 offen sc1")
    a("s_mov_b64 exec, -1")
    a("s_branch k_load")
    O, ML, F, AC, TT = 16, 32, 40, 48, 52
    VTR, TS, VO, VML, VOUT, C0, C1, C2, FL, VFL = 56, 60, 61, 62, 63, 64, 65, 66, 67, 68
    T, PT, RA, MLP, VRD, VMP = 96, 112, 128, 132, 134, 135
    a.lab("k_early")
    a(f"s_mov_b32 s18, {WS_SIZE if not prof else (16<<20)}")
    a("s_mov_b32 s19, 0x00020000")
    a("s_lshr_b32 s53, s45, 3")
    a("s_mov_b32 s22, 256")
    a("s_mov_b32 s23, 0x00020000")
    a("s_cmp_eq_u32 s53, s3" if cw < 0 else f"s_cmp_eq_u32 s3, {cw}")
    a("s_cselect_b32 s55, 1, 0")
    a("s_mov_b32 s64, 0")
    a("s_cbranch_scc0 k_noprep")
    a("s_load_dwordx2 s[36:37], s[0:1], 24")
    a("s_load_dwordx2 s[8:9], s[0:1], 32")
    a("s_load_dwordx2 s[6:7], s[0:1], 40")
    a("s_load_dwordx2 s[12:13], s[0:1], 48")
    a("s_mov_b32 s38, 2048")
    a("s_mov_b32 s39, 0x00020000")
    a("s_mov_b32 s10, 2048")
    a("s_mov_b32 s11, 0x00020000")
    a("s_mov_b32 s14, 16384")
    a("s_mov_b32 s15, 0x00020000")
    a("s_lshr_b32 s56, s45, 2")
    a("s_lshl_b32 s56, s56, 8")
    a("s_add_u32 s56, s56, s49")
    a("s_lshl_b32 s57, s44, 8")
    a("s_and_b32 s58, s45, 3")
    a("s_lshl_b32 s58, s58, 6")
    a("s_add_u32 s59, s58, s57")
    a("s_add_u32 s58, s58, s56")
    a("s_lshl_b32 s54, s44, 5")
    a(f"v_lshlrev_b32 v{C0}, 2, v2")
    a(f"v_and_b32 v{VOUT}, 7, v2")
    a(f"v_lshlrev_b32 v{VO}, 4, v{VOUT}")
    a(f"v_lshlrev_b32 v{VFL}, 2, v{VOUT}")
    a(f"v_lshlrev_b32 v{VOUT}, 1, v{VOUT}")
    a(f"v_mov_b32 v{FL}, 0")
    a("s_mov_b32 s62, 0x01010101")
    for i in range(4):
        a(f"v_mov_b32 v{VTR+i}, 0")
    a("s_waitcnt lgkmcnt(0)")
    a("s_load_dword s6, s[6:7], 0")
    a(f"buffer_load_dword v{AC+1}, v{C0}, s[24:27], s56 offen")
    a(f"buffer_load_dword v{AC+2}, v{C0}, s[36:39], s57 offen")
    a("s_mov_b64 exec, 0xff")
    for i in range(4):
        a(f"buffer_load_short_d16_hi v{VTR+i}, v{VOUT}, s[8:11], s59 offen offset:{16*i}")
    a("s_mov_b64 exec, -1")
    a(f"v_lshrrev_b32 v{C1}, 3, v2")
    a(f"v_lshlrev_b32 v{VML}, 5, v{C1}")
    a(f"v_mul_u32_u24 v{C1}, {OBS}, v{C1}")
    a(f"v_add_u32 v{VO}, v{VO}, v{C1}")
    a(f"v_mov_b32 v{C0}, 48")
    a(f"v_and_or_b32 v{VOUT}, v2, v{C0}, v{VOUT}")
    a(f"s_mul_i32 s66, s44, {32*OBS}")
    a("s_lshl_b32 s67, s45, 7")
    a("s_add_u32 s66, s66, s67")
    for q in range(1, 4):
        a(f"s_add_u32 s{66+q}, s66, {8*OBS*q}")
    a(f"s_add_u32 s56, s56, {ML_OFF}")
    for i in range(24):
        a(f"v_mov_b32 v{O+i}, -1")
    a(f"s_mov_b32 s7, {f32(-1e9*LOG2E)}")
    a("s_waitcnt lgkmcnt(0)")
    a("s_lshl_b32 s5, s6, 16")
    a("s_and_b32 s6, s6, 0xffff0000")
    a("s_cmp_ge_u32 s44, 4")
    a("s_cselect_b32 s6, s6, s5")
    a(f"v_mov_b32 v{TS}, s6")
    a(f"v_sub_f32 v{TS}, 1.0, v{TS}")
    a(f"v_mul_f32 v{TS}, s7, v{TS}")
    a("s_mov_b32 s60, 0")
    a("s_mov_b32 s61, 0")
    a("s_mov_b32 s63, 0")
    a("s_mov_b32 s65, 0")
    a("s_waitcnt vmcnt(0)")
    a(f"v_lshlrev_b32 v{C0}, 16, v{AC+1}")
    a(f"v_lshlrev_b32 v{C1}, 16, v{AC+2}")
    a(f"v_and_b32 v{AC+1}, 0xffff0000, v{AC+1}")
    a(f"v_and_b32 v{AC+2}, 0xffff0000, v{AC+2}")
    a(f"v_mul_f32 v{C0}, v{C0}, v{C1}")
    a(f"v_fma_f32 v{C0}, v{AC+1}, v{AC+2}, v{C0}")
    for d in ("quad_perm:[1,0,3,2]", "quad_perm:[2,3,0,1]", "row_half_mirror", "row_mirror"):
        a("s_nop 1")
        a(f"v_add_f32 v{C0}, v{C0}, v{C0} {d}")
    for s_ in ("16", "32"):
        a(f"v_mov_b32 v{C1}, v{C0}")
        a("s_nop 1")
        a(f"v_permlane{s_}_swap_b32 v{C0}, v{C1}")
        a(f"v_add_f32 v{C0}, v{C0}, v{C1}")
    a(f"v_fma_f32 v{TS}, v{C0}, s46, v{TS}")
    a.lab("k_noprep")
    a(f"s_cmp_lg_u32 s3, {sw}")
    a("s_cbranch_scc1 k_noflag")
    a(f"v_mov_b32 v{VRD}, 1")
    a(f"v_mov_b32 v{VMP}, 0")
    a("s_mov_b64 exec, 1")
    a(f"buffer_store_byte v{VRD}, v{VMP}, s[20:23], {IDX} offen sc1")
    a("s_mov_b64 exec, -1")
    a.lab("k_noflag")
    a(f"v_lshrrev_b32 v{VMP}, 5, v2")
    a("s_lshl_b32 s5, s3, 1")
    a(f"v_add_u32 v{VRD}, s5, v{VMP}")
    a(f"v_lshlrev_b32 v{MLP}, 6, v{VRD}")
    a(f"v_mul_u32_u24 v{VRD}, 528, v{VRD}")
    a(f"v_and_b32 v{MLP+1}, 31, v2")
    a(f"v_lshl_add_u32 v{VRD}, v{MLP+1}, 4, v{VRD}")
    a(f"v_lshlrev_b32 v{VMP}, 8, v{VMP}")
    a(f"s_mul_i32 s51, {IDX}, {OBS}")
    a("s_lshl_b32 s5, s3, 10")
    a("s_add_u32 s51, s51, s5")
    a("s_and_b32 s52, s45, 7")
    a("s_lshl_b32 s52, s52, 5")
    a("s_lshl_b32 s53, s53, 3")
    a("s_add_u32 s52, s52, s53")
    a("s_add_u32 s52, s52, s49")
    a("s_lshl_b32 s5, s3, 9")
    a("s_add_u32 s52, s52, s5")
    a(f"s_add_u32 s52, s52, {ML_OFF}")
    for i in range(4):
        a(f"v_mov_b32 v{RA+i}, 0")
    a("s_mov_b64 s[70:71], 0")
    a("s_waitcnt lgkmcnt(0)")
    a("s_barrier")
    a("s_cmp_eq_u32 s55, 0")
    a("s_cbranch_scc1 k_nofl")
    a(f"buffer_load_dword v{FL}, v{VFL}, s[20:23], s54 offen sc1")
    a.lab("k_nofl")
    for i in range(4):
        a(f"ds_read_b128 {vr(T+4*i)}, v{MLP} offset:{LDS_ML+16*i}")
    a("s_waitcnt lgkmcnt(0)")
    ts(4)
    a(f"v_max3_f32 v{MLP}, v{T}, v{T+2}, v{T+4}")
    a(f"v_max3_f32 v{MLP+1}, v{T+6}, v{T+8}, v{T+10}")
    a(f"v_max3_f32 v{MLP}, v{MLP}, v{T+12}, v{T+14}")
    a(f"v_max_f32 v{MLP}, v{MLP}, v{MLP+1}")
    for j in range(8):
        a(f"v_sub_f32 v{T+2*j}, v{T+2*j}, v{MLP}")
    for j in range(8):
        a(f"v_exp_f32 v{T+2*j}, v{T+2*j}")
    a("s_nop 0")
    a(f"v_mul_f32 v{MLP+1}, v{T}, v{T+1}")
    for j in range(1, 8):
        a(f"v_fma_f32 v{MLP+1}, v{T+2*j}, v{T+2*j+1}, v{MLP+1}")
    a("s_mov_b32 exec_lo, 1")
    a("s_mov_b32 exec_hi, 1")
    a(f"buffer_store_dwordx2 v[{MLP}:{MLP+1}], v{VMP}, s[16:19], s52 offen sc1")
    a("s_mov_b64 exec, -1")
    if prof: a("s_waitcnt lgkmcnt(0)")
    a("s_branch k_red")
    a.lab("k_barb")
    a("s_barrier")
    a.lab("k_red")
    for j in range(4):
        a(f"ds_read_b128 {vr(PT+4*j)}, v{VRD} offset:{WST*j}")
    for j in range(4):
        a(f"s_waitcnt lgkmcnt({3-j})")
        for h in range(2):
            a(f"v_pk_fma_f32 v[{RA+2*h}:{RA+2*h+1}], v[{PT+4*j+2*h}:{PT+4*j+2*h+1}], v[{T+2*j}:{T+2*j+1}], v[{RA+2*h}:{RA+2*h+1}] op_sel_hi:[1,0,1]")
    a("s_mov_b64 exec, s[70:71]")
    a(f"buffer_store_dwordx4 {vr(RA)}, v6, s[16:19], s51 offen sc1")
    a("s_cbranch_execnz k_post")
    a("s_mov_b64 exec, -1")
    a("s_mov_b64 s[70:71], -1")
    for j in range(4):
        a(f"v_mov_b32 v{T+2*j}, v{T+8+2*j}")
    a(f"v_add_u32 v{VRD}, {4*WST}, v{VRD}")
    a("s_cmp_eq_u32 s55, 0")
    a("s_cbranch_scc1 k_barb")
    a("s_branch k_cons")
    a.lab("k_post")
    ts(5)
    a("s_cmp_eq_u32 s55, 0")
    a("s_cbranch_scc1 " + ("k_end" if not prof else "k_pend"))
    if nopoll: a("s_branch k_pend")
    a(f"v_cmp_ne_u32 vcc, s62, v{FL}")
    a("s_mov_b32 s60, 1")
    a("s_cbranch_vccnz k_cspin")
    a.lab("k_cons")
    a("s_cmp_lg_u32 s61, 0")
    a("s_cbranch_scc1 k_acc")
    a(f"v_max3_u32 v{C0}, v{ML}, v{ML+1}, v{ML+2}")
    a(f"v_max3_u32 v{C1}, v{ML+3}, v{ML+4}, v{ML+5}")
    a(f"v_max3_u32 v{C0}, v{C0}, v{ML+6}, v{ML+7}")
    a(f"v_max_u32 v{C0}, v{C0}, v{C1}")
    a(f"v_cmp_eq_u32 vcc, -1, v{C0}")
    a("s_cmp_eq_u64 vcc, 0")
    a("s_cselect_b32 s61, 1, 0")
    a("s_cmp_gt_u32 s60, s61")
    a("s_cbranch_scc1 k_retry")
    a.lab("k_fac")
    a(f"v_max3_f32 v{C0}, v{ML}, v{ML+2}, v{ML+4}")
    a(f"v_max3_f32 v{C0}, v{C0}, v{ML+6}, v{TS}")
    a("s_nop 1")
    a(f"v_max_f32 v{C0}, v{C0}, v{C0} row_ror:8")
    for s_ in ("16", "32"):
        a(f"v_mov_b32 v{C1}, v{C0}")
        a("s_nop 1")
        a(f"v_permlane{s_}_swap_b32 v{C0}, v{C1}")
        a(f"v_max_f32 v{C0}, v{C0}, v{C1}")
    for q in range(4):
        a(f"v_sub_f32 v{F+2*q}, v{ML+2*q}, v{C0}")
    a(f"v_sub_f32 v{C2}, v{TS}, v{C0}")
    for q in range(4):
        a(f"v_exp_f32 v{F+2*q}, v{F+2*q}")
    a(f"v_exp_f32 v{C2}, v{C2}")
    a(f"v_mul_f32 v{C0}, v{F}, v{ML+1}")
    for q in range(1, 4):
        a(f"v_fma_f32 v{C0}, v{F+2*q}, v{ML+2*q+1}, v{C0}")
    a("s_nop 1")
    a(f"v_add_f32 v{C0}, v{C0}, v{C0} row_ror:8")
    for s_ in ("16", "32"):
        a(f"v_mov_b32 v{C1}, v{C0}")
        a("s_nop 1")
        a(f"v_permlane{s_}_swap_b32 v{C0}, v{C1}")
        a(f"v_add_f32 v{C0}, v{C0}, v{C1}")
    a(f"v_add_f32 v{C0}, v{C0}, v{C2}")
    a(f"v_rcp_f32 v{C0}, v{C0}")
    a("s_nop 0")
    a(f"v_mul_f32 v{C2}, v{C2}, v{C0}")
    for q in range(4):
        a(f"v_mul_f32 v{F+2*q}, v{F+2*q}, v{C0}")
    for i in range(4):
        a(f"v_mul_f32 v{TT+i}, v{C2}, v{VTR+i}")
    a.lab("k_acc")
    for q in range(4):
        for h in range(2):
            src = TT if q == 0 else AC
            a(f"v_pk_fma_f32 v[{AC+2*h}:{AC+2*h+1}], v[{O+4*q+2*h}:{O+4*q+2*h+1}], v[{F+2*q}:{F+2*q+1}], v[{src+2*h}:{src+2*h+1}] op_sel_hi:[1,0,1]")
    a("s_nop 1")
    a(f"v_permlane32_swap_b32 v{AC}, v{AC+2}")
    a(f"v_permlane32_swap_b32 v{AC+1}, v{AC+3}")
    a(f"v_pk_add_f32 v[{AC}:{AC+1}], v[{AC}:{AC+1}], v[{AC+2}:{AC+3}]")
    a("s_nop 1")
    a(f"v_permlane16_swap_b32 v{AC}, v{AC+1}")
    a(f"v_add_f32 v{AC}, v{AC}, v{AC+1}")
    a("s_nop 1")
    a(f"v_add_f32 v{AC}, v{AC}, v{AC} row_ror:8")
    a(f"v_cmp_u_f32 vcc, v{AC}, v{AC}")
    a(f"v_cvt_pk_bf16_f32 v{AC}, v{AC}, v{AC}")
    a("s_cbranch_vccnz k_nan")
    a.lab("k_store")
    a("s_mov_b32 exec_lo, 0x00ff00ff")
    a("s_mov_b32 exec_hi, 0x00ff00ff")
    a(f"buffer_store_short v{AC}, v{VOUT}, s[12:15], s58 offen{osc}")
    if prof:
        a("s_branch k_pend")
    a("s_waitcnt vmcnt(1)")
    a("s_endpgm")
    a.lab("k_nan")
    a("s_cmp_lg_u32 s65, 0")
    a("s_cbranch_scc1 k_store")
    a.lab("k_retry")
    for q in range(4):
        a(f"v_max3_u32 v{C0}, v{O+4*q}, v{O+4*q+1}, v{O+4*q+2}")
        a(f"v_max_u32 v{C0}, v{C0}, v{O+4*q+3}")
        a(f"v_cmp_eq_u32 s[{90+2*q}:{91+2*q}], -1, v{C0}")
    a("s_cmp_eq_u32 s60, 0")
    if not preb:
        a("s_cbranch_scc1 k_barb")
    else:
        a("s_cbranch_scc0 k_go")
        a(f"v_cmp_ne_u32 vcc, s62, v{FL}")
        a("s_cbranch_vccnz k_barb")
        a.lab("k_go")
    a("s_cmp_lg_u32 s61, 0")
    a("s_cbranch_scc1 k_noml")
    a(f"buffer_load_dwordx4 {vr(ML)}, v{VML}, s[16:19], s56 offen sc1")
    a(f"buffer_load_dwordx4 {vr(ML+4)}, v{VML}, s[16:19], s56 offen offset:16 sc1")
    if mlgate: a("s_branch k_noo")
    a.lab("k_noml")
    for q in range(4):
        a(f"s_mov_b64 exec, s[{90+2*q}:{91+2*q}]")
        a(f"buffer_load_dwordx4 {vr(O+4*q)}, v{VO}, s[16:19], s{66+q} offen sc1")
    a("s_mov_b64 exec, -1")
    a.lab("k_noo")
    a("s_cmp_eq_u32 s60, 0")
    a("s_cbranch_scc1 k_barb")
    a("s_or_b64 s[90:91], s[90:91], s[92:93]")
    a("s_or_b64 s[94:95], s[94:95], s[96:97]")
    a("s_or_b64 s[90:91], s[90:91], s[94:95]")
    a("s_cselect_b32 s5, 0, s61")
    a("s_add_u32 s63, s63, s5")
    a("s_add_u32 s64, s64, 1")
    a(f"s_cmp_ge_u32 s64, {LIM}")
    a("s_cbranch_scc1 k_final")
    a(f"s_waitcnt vmcnt({pw})")
    a("s_cmp_lt_u32 s63, 2")
    a("s_cbranch_scc1 k_cons")
    a.lab("k_final")
    a("s_waitcnt vmcnt(0)")
    a("s_mov_b32 s65, 1")
    a("s_branch k_fac")
    a.lab("k_cspin")
    a(f"buffer_load_dword v{FL}, v{VFL}, s[20:23], s54 offen sc1")
    a("s_add_u32 s64, s64, 1")
    a(f"s_cmp_ge_u32 s64, {LIM}")
    a("s_cbranch_scc1 k_final")
    a("s_waitcnt vmcnt(3)")
    a(f"v_cmp_ne_u32 vcc, s62, v{FL}")
    a("s_cbranch_vccnz k_cspin")
    a("s_branch k_retry")
    if prof:
        a.lab("k_pend")
        ts(6)
        a.lab("k_prof")
        a(f"s_mov_b32 s18, {16<<20}")
        a("s_mov_b32 s19, 0x00020000")
        a("s_getreg_b32 s87, hwreg(HW_REG_XCC_ID)")
        a("s_mov_b32 s86, s64")
        a("s_waitcnt lgkmcnt(0)")
        a("s_mov_b64 exec, 1")
        for i in range(16):
            a(f"v_mov_b32 v{100+i}, s{72+i}")
        a("s_lshl_b32 s51, s2, 3")
        a("s_add_u32 s51, s51, s3")
        a("s_lshl_b32 s51, s51, 6")
        a(f"s_add_u32 s51, s51, {8<<20}")
        a("v_mov_b32 v99, 0")
        for i in range(4):
            a(f"buffer_store_dwordx4 v[{100+4*i}:{103+4*i}], v99, s[16:19], s51 offen offset:{16*i}")
        a("s_waitcnt vmcnt(0)")
        a("s_endpgm")
    return a.txt(), 168

def build(opt):
    n1 = NAME + "_kernel"
    t1, nv1 = kern(opt)
    s = "\n".join(HDR) + "\n"
    s += f"; @launch grid=(256,1,1) block=(512,1,1) lds={LDS_SZ}\n"
    s += '.amdgcn_target "amdgcn-amd-amdhsa--gfx950"\n.text\n'
    s += f".globl {n1}\n.p2align 8\n.type {n1},@function\n{n1}:\n" + t1
    s += '.section .rodata,"a"\n.p2align 6\n' + desc(n1, nv1, 100)
    return s

if __name__ == "__main__":
    opt = {}
    out = f"cdna_kernels/{NAME}.s"
    for x in sys.argv[1:]:
        k, v = x.split("=")
        if k == "out":
            out = v
        else:
            opt[k] = int(v)
    open(out, "w").write(build(opt))
```
